```python
import torch

def _softmax(x, axis=-1):
    return torch.softmax(x, dim=axis)

def _gelu(x):
    return torch.nn.functional.gelu(x, approximate='tanh')

def _silu(x):
    return torch.nn.functional.silu(x)

def _sigmoid(x):
    return torch.sigmoid(x)

def _layernorm(x, axis=-1, eps=1e-05):
    m = x.mean(dim=axis, keepdim=True)
    v = x.var(dim=axis, keepdim=True, unbiased=False)
    return (x - m) / torch.sqrt(v + eps)

def _scatter_add(tgt, idx, src, axis=0):
    return tgt.clone().index_add_(axis, idx, src)

def _segment_sum(src, seg, n):
    out = torch.zeros((n,) + src.shape[1:], dtype=src.dtype)
    return out.index_add_(0, seg, src)

def _pad(x, pw):
    flat = tuple((v for pair in reversed(pw) for v in pair))
    return torch.nn.functional.pad(x, flat)
kernel_name = 'adaLN_cond__compressed_kv_cla__mixer_channel_mlp__decode'

def setup_inputs():

    _w = lambda a: (lambda t: t.to(torch.bfloat16) if t.is_floating_point() else t)(torch.as_tensor(a))

    def _A_setup():
        B, H, Sq, Sk, D, M = (2, 32, 1, 8192, 128, 512)
        Dc = 4 * D
        return {'x': _w((lambda *s: torch.randn(*s, dtype=torch.bfloat16) * 0.1)(B, Sq, M)), 'c_kv': _w((lambda *s: torch.randn(*s, dtype=torch.bfloat16) * 0.8)(B, Sk, Dc)), 'w_q': _w((lambda *s: torch.randn(*s, dtype=torch.bfloat16) * 0.8)(M, H, D) * M ** (-0.5)), 'w_uk': _w((lambda *s: torch.randn(*s, dtype=torch.bfloat16) * 0.8)(Dc, H, D) * Dc ** (-0.5)), 'w_uv': _w((lambda *s: torch.randn(*s, dtype=torch.bfloat16) * 0.8)(Dc, H, D) * Dc ** (-0.5)), 'w_o': _w((lambda *s: torch.randn(*s, dtype=torch.bfloat16) * 0.8)(H, D, M) * (H * D) ** (-0.5))}
    _A_in = _A_setup()

    def _B_setup():
        B, S, D, F = (2, 1, 512, 1792)
        return {'x': _w((lambda *s: torch.randn(*s, dtype=torch.bfloat16) * 0.1)(B, S, D)), 'w1': _w((lambda *s: torch.randn(*s, dtype=torch.bfloat16) * 3.2)(D, F) * D ** (-0.5)), 'b1': _w((lambda *s: torch.randn(*s, dtype=torch.bfloat16) * 3.2)(F)), 'w2': _w((lambda *s: torch.randn(*s, dtype=torch.bfloat16) * 0.8)(F, D) * F ** (-0.5)), 'b2': _w((lambda *s: torch.randn(*s, dtype=torch.bfloat16) * 1.6)(D))}
    _B_in = _B_setup()
    return {'A_x': _A_in['x'], 'A_c_kv': _A_in['c_kv'], 'A_w_q': _A_in['w_q'], 'A_w_uk': _A_in['w_uk'], 'A_w_uv': _A_in['w_uv'], 'A_w_o': _A_in['w_o'], 'B_x': _B_in['x'], 'B_w1': _B_in['w1'], 'B_b1': _B_in['b1'], 'B_w2': _B_in['w2'], 'B_b2': _B_in['b2'], 'c': _w((lambda *s: torch.randn(*s, dtype=torch.bfloat16) * 0.8)(2, 512) * 8.0), 'w_mod': _w((lambda *s: torch.randn(*s, dtype=torch.bfloat16) * 0.8)(512, 6 * 512) * 512 ** (-0.5) * 8.0)}

def reference(A_x, A_c_kv, A_w_q, A_w_uk, A_w_uv, A_w_o, B_x, B_w1, B_b1, B_w2, B_b2, c, w_mod):

    def _A_ref(x, c_kv, w_q, w_uk, w_uv, w_o):
        B, Sq, M = (x.shape[0], x.shape[1], x.shape[2])
        Sk = c_kv.shape[1]
        H, D = (w_q.shape[1], w_q.shape[2])
        q = torch.einsum('bqm,mhd->bhqd', x, w_q)
        k = torch.einsum('bkc,chd->bhkd', c_kv, w_uk)
        v = torch.einsum('bkc,chd->bhkd', c_kv, w_uv)
        scores = torch.einsum('bhqd,bhkd->bhqk', q, k) * D ** (-0.5)
        off = Sk - Sq
        qi = torch.arange(Sq)[:, None]
        kj = torch.arange(Sk)[None, :]
        cmask = kj <= qi + off
        scores = torch.where(cmask[None, None], scores, -1000000000.0)
        p = _softmax(scores, axis=-1)
        ctx = torch.einsum('bhqk,bhkd->bhqd', p, v)
        return torch.einsum('bhqd,hdm->bqm', ctx, w_o)

    def _B_ref(x, w1, b1, w2, b2):
        y = _layernorm(x, axis=-1)
        h = _gelu(torch.einsum('bsd,df->bsf', y, w1) + b1)
        return torch.einsum('bsf,fd->bsd', h, w2) + b2
    x = A_x
    mod = (_silu(c) @ w_mod).reshape(c.shape[0], 6, 1, -1)
    sa, ca, ga, sb, cb, gb = (mod[:, 0].clone(), mod[:, 1].clone(), mod[:, 2].clone(), mod[:, 3].clone(), mod[:, 4].clone(), mod[:, 5].clone())
    h = _layernorm(x, axis=-1) * (1 + ca) + sa
    x = x + ga * _A_ref(h, A_c_kv, A_w_q, A_w_uk, A_w_uv, A_w_o)
    h = _layernorm(x, axis=-1) * (1 + cb) + sb
    x = x + gb * _B_ref(h, B_w1, B_b1, B_w2, B_b2)
    return x
```

```python
KNAME = "adaLN_cond__compressed_kv_cla__mixer_channel_mlp__decode_kernel"

HEADER = """; Kernarg layout for this problem (128 bytes, ptrs only, base s[0:1]):
"""

SIZES = dict(x=2048, ckv=16777216, wq=4194304, wuk=4194304, wuv=4194304, wo=4194304,
             bx=2048, w1=1835008, b1=3584, w2=1835008, b2=1024, c=2048, wmod=3145728,
             out=2048, dbg=256, ws=268435456)
KOFF = dict(x=0, ckv=8, wq=16, wuk=24, wuv=32, wo=40, bx=48, w1=56, b1=64, w2=72, b2=80,
            c=88, wmod=96, out=104, dbg=112, ws=120)


class Asm:
    def __init__(self):
        self.lines = []
        self.nlab = 0

    def __call__(self, s=""):
        for l in s.split("\n"):
            l = l.strip()
            if not l:
                continue
            if l.endswith(":") and " " not in l:
                self.lines.append(l)
            else:
                self.lines.append("    " + l)

    def label(self, base="L"):
        self.nlab += 1
        return f"{base}_{self.nlab}"

    def text(self):
        return "\n".join(self.lines) + "\n"


def wrap(body, grid, block, lds, vgpr=256, accum=None, sgpr=102, agpr=0):
    if accum is None:
        accum = (vgpr + 3) // 4 * 4
    nfv = accum + agpr if agpr else vgpr
    s = HEADER
    s += f"; @launch grid=({grid},1,1) block=({block},1,1) lds={lds}\n"
    s += '.amdgcn_target "amdgcn-amd-amdhsa--gfx950"\n.text\n'
    s += f".globl {KNAME}\n.p2align 8\n.type {KNAME},@function\n{KNAME}:\n"
    s += body
    s += '.section .rodata,"a"\n.p2align 6\n'
    s += f".amdhsa_kernel {KNAME}\n"
    s += f"  .amdhsa_next_free_vgpr {nfv}\n  .amdhsa_next_free_sgpr {sgpr}\n  .amdhsa_accum_offset {accum}\n"
    s += "  .amdhsa_group_segment_fixed_size 0\n  .amdhsa_kernarg_size 128\n  .amdhsa_user_sgpr_count 2\n"
    s += "  .amdhsa_user_sgpr_kernarg_segment_ptr 1\n  .amdhsa_system_sgpr_workgroup_id_x 1\n.end_amdhsa_kernel\n"
    return s
```

```python
import re
TRANS = ("v_exp_", "v_log_", "v_rcp_", "v_rsq_", "v_sqrt_", "v_sin_", "v_cos_")

def regs(tok):
    tok = tok.strip().lstrip("-").strip("|")
    m = re.fullmatch(r"([vsa])(\d+)", tok)
    if m: return {(m.group(1), int(m.group(2)))}
    m = re.fullmatch(r"([vsa])\[(\d+):(\d+)\]", tok)
    if m: return {(m.group(1), i) for i in range(int(m.group(2)), int(m.group(3)) + 1)}
    if tok == "vcc": return {("s", 106), ("s", 107)}
    if tok == "exec": return {("x", 0)}
    if tok == "m0": return {("m", 0)}
    return set()

class I:
    def __init__(self, line):
        self.line = line
        t = line.split(";")[0].strip()
        self.label = t[:-1] if t.endswith(":") else None
        self.op = ""; self.w = set(); self.r = set(); self.ws = 0
        self.kind = None; self.dpp = False; self.A = self.B = self.C = set(); self.data = set(); self.tgt = None
        if self.label or not t: return
        p = t.split(None, 1)
        op = self.op = p[0]
        rest = p[1] if len(p) > 1 else ""
        rest2 = re.sub(r"quad_perm:\[[^\]]*\]", "quad_perm", rest)
        rest2 = re.sub(r"(op_sel|op_sel_hi|neg_lo|neg_hi):\[[^\]]*\]", "", rest2)
        ops = [o.strip() for o in rest2.split(",")]
        if ops: ops[-1] = ops[-1].split()[0] if ops[-1].split() else ""
        R = [regs(o) for o in ops]
        self.ws = 1
        if op == "s_nop": self.ws = int(ops[0]) + 1
        if op.startswith("v_mfma"):
            self.kind = "mfma"; self.w = R[0]; self.A, self.B, self.C = R[1], R[2], R[3]; self.r = R[1] | R[2] | R[3]
        elif op.startswith("v_"):
            self.kind = "valu"
            self.dpp = "_dpp" in op
            self.w = set(R[0]); self.r = set().union(*R[1:]) if len(R) > 1 else set()
            if op.startswith(("v_permlane", "v_swap")): self.w = R[0] | R[1]; self.r = R[0] | R[1]
            if op.startswith(("v_fmac", "v_dot2c", "v_writelane")) or self.dpp: self.r |= R[0] if op.startswith(("v_fmac", "v_dot2c", "v_writelane")) else set()
            if op.startswith("v_cndmask") and len(ops) == 3: self.r |= regs("vcc")
            if "_co_" in op: self.w |= R[1]
            if op.startswith("v_cmpx"): self.w |= regs("exec")
        elif op.startswith("buffer_"):
            self.kind = "vmem"
            self.lds = " lds" in (" " + rest)
            if self.lds: self.r = set().union(*R) | regs("m0")
            elif "load" in op: self.w = R[0]; self.r = set().union(*R[1:])
            else:
                self.r = set().union(*R); self.data = R[0] if ("x4" in op or "x3" in op) else set()
                if "atomic" in op and "sc0" in rest: self.w = R[0]
        elif op.startswith("ds_"):
            self.kind = "ds"
            if "read" in op: self.w = R[0]; self.r = set().union(*R[1:])
            else: self.r = set().union(*R)
        elif op.startswith("s_"):
            self.kind = "salu"
            if op.startswith(("s_cbranch", "s_branch")): self.tgt = ops[0]
            elif op.startswith(("s_cmp", "s_waitcnt", "s_barrier", "s_nop", "s_endpgm", "s_sleep", "s_setprio")): self.r = set().union(*R) if R else set()
            else:
                self.w = R[0]; self.r = set().union(*R[1:]) if len(R) > 1 else set()

V = lambda s: {x for x in s if x[0] in "va"}
S = lambda s: {x for x in s if x[0] == "s"}

def need(p, c):
    n = 0
    if p.kind == "valu":
        wv = V(p.w); wsg = S(p.w)
        if c.kind == "mfma" and wv & c.r: n = max(n, 2)
        if c.kind == "valu":
            if (c.dpp or c.op.startswith("v_permlane")) and wv & (c.r | (c.w if c.dpp else set())): n = max(n, 2)
            if c.op.startswith(("v_readfirstlane", "v_readlane")) and wv & c.r: n = max(n, 1)
            if wsg & c.r: n = max(n, 4 if c.op.startswith(("v_readlane", "v_writelane")) else 2)
            if p.op.startswith(TRANS) and wv & c.r: n = max(n, 1)
            if p.op.startswith("v_dot") and wv & (c.r | c.w): n = max(n, 3)
            if ("op_sel" in p.line or "_sdwa" in p.op) and wv & (c.r | c.w): n = max(n, 1)
        if c.kind == "vmem" and wsg & c.r: n = max(n, 5)
        if c.kind == "salu" and c.op.startswith("s_cbranch_vcc") and wsg & regs("vcc"): n = max(n, 1)
        if ("x", 0) in p.w: n = max(n, 5)
    if p.kind == "mfma":
        if c.kind == "mfma":
            if p.w & (c.A | c.B): n = max(n, 8)
            if p.w & c.C and p.w != c.C: n = max(n, 6)
            if p.w & c.w and not (p.w == c.C): n = max(n, 6)
        elif c.kind in ("valu", "vmem", "ds"):
            if p.w & (c.r | c.w): n = max(n, 8)
            if c.kind == "valu" and p.C & c.w: n = max(n, 3)
    if p.kind == "vmem" and p.data & c.w: n = max(n, 2)
    if p.kind == "salu" and ("m", 0) in p.w and c.kind == "vmem" and ("m", 0) in c.r: n = max(n, 1)
    return n

def fix(lines, verbose=False):
    ins = [I(l) for l in lines]
    total = 0
    i = 0
    while i < len(ins):
        c = ins[i]
        if c.kind:
            br = {}
            for k, x in enumerate(ins):
                if x.tgt: br.setdefault(x.tgt, []).append(k)
            worst = 0
            stack = [(i - 1, 0, True)]; seen = set()
            while stack:
                k, d, ft = stack.pop()
                if k < 0 or d >= 9 or (k, d) in seen: continue
                seen.add((k, d))
                p = ins[k]
                if p.label:
                    for b in br.get(p.label, []): stack.append((b, d, False))
                    stack.append((k - 1, d, True)); continue
                if not p.kind: stack.append((k - 1, d, True)); continue
                if ft and p.op in ("s_branch", "s_endpgm"): continue
                worst = max(worst, need(p, c) - d)
                stack.append((k - 1, d + p.ws, True))
            if worst > 0:
                ins.insert(i, I(f"    s_nop {worst-1}")); total += worst
                if verbose: print("pad", worst, "before", c.line.strip())
                i += 1
        i += 1
    return [x.line for x in ins], total
```

```python
from asmlib import *
import hazard, struct

def f2u(x): return struct.unpack("<I", struct.pack("<f", x))[0]
LOG2E = 1.4426950408889634
H1, H3, H4B, H5, HM, H7, ML, H4 = 0, 0x10000, 0x20000, 0x30000, 0x38000, 0x40000, 0x80000, 0x100000
STAMP = 0x800000
QL, PB, MX, MLW, YL, HID, RED, KV = 0, 16384, 20480, 20992, 21504, 23552, 0, 32768
B2L, B3L = KV + 32768, KV + 65536
SRD = dict(ws=4, ckv=8, wq=12, wuk=16, wuv=20, wo=24, w1=28, w2=32, wmod=36, x=40, c=44, b1=48, b2=52, out=56, dbg=60)
def R(n): return f"s[{SRD[n]}:{SRD[n]+3}]"
def vr(a, n): return f"v[{a}:{a+n-1}]" if n > 1 else f"v{a}"
sW, sX, sB, sP = 3, 64, 65, 66
sT0, sT1, sT2, sT3, sIT = 67, 68, 69, 70, 71
sCK, sKVW, sE0 = 72, 73, 74
sH, sCQ, sB6 = 76, 77, 78
sSZW = 79
SPIN = 1 << 16
FULL = "row_mask:0xf bank_mask:0xf"

def gen(NPRE=4, NPREB=4, stamps=False, stop=99):
    a = Asm()
    def stamp(k):
        if stamps: a(f"s_memrealtime s[{80+2*k}:{81+2*k}]")
    def exec_set(lo, hi): a(f"s_mov_b32 exec_lo, {lo}\ns_mov_b32 exec_hi, {hi}")
    def exec_all(): a("s_mov_b64 exec, -1")
    def mfma(d, A, B, c=None): a(f"v_mfma_f32_16x16x32_bf16 {vr(d,4)}, {vr(A,4)}, {vr(B,4)}, {vr(d,4) if c is None else c}")
    def red_s(op, regs, tmps):
        for sw in ("v_permlane32_swap_b32", "v_permlane16_swap_b32"):
            for r, t in zip(regs, tmps): a(f"v_mov_b32 v{t}, v{r}")
            for r, t in zip(regs, tmps): a(f"{sw} v{r}, v{t}")
            for r, t in zip(regs, tmps): a(f"{op} v{r}, v{r}, v{t}")
    def red_dpp(op, regs, steps):
        for st in steps:
            for r in regs: a(f"{op}_dpp v{r}, v{r}, v{r} {st} {FULL}")
    R8 = ["quad_perm:[1,0,3,2]", "quad_perm:[2,3,0,1]", "row_half_mirror"]
    R16 = ["row_ror:8", "row_ror:4", "row_ror:2", "row_ror:1"]
    def check(dw, tmp, loop, out):
        dw = list(dw)
        if len(dw) == 1: cur = dw.pop()
        else:
            cur = None
            while dw:
                if cur is None:
                    if len(dw) >= 3: a(f"v_max3_u32 v{tmp}, v{dw[0]}, v{dw[1]}, v{dw[2]}"); dw = dw[3:]
                    else: a(f"v_max_u32 v{tmp}, v{dw[0]}, v{dw[1]}"); dw = dw[2:]
                    cur = tmp
                elif len(dw) >= 2: a(f"v_max3_u32 v{tmp}, v{tmp}, v{dw[0]}, v{dw[1]}"); dw = dw[2:]
                else: a(f"v_max_u32 v{tmp}, v{tmp}, v{dw[0]}"); dw = dw[1:]
        a(f"v_cmp_eq_u32 vcc, -1, v{cur}")
        a(f"s_cbranch_vccz {out}")
        a(f"s_add_u32 s{sIT}, s{sIT}, 1\ns_cmp_lt_u32 s{sIT}, {SPIN}\ns_cbranch_scc1 {loop}")
    def ckv_dma(k):
        q, g = k >> 2, k & 3
        a(f"s_add_u32 m0, s{sKVW}, {q*3840+g*1024}")
        a(f"buffer_load_dwordx4 v{12+g}, {R('ckv')}, s{sCK} offen offset:{q*256} lds")

    a("s_cmp_ge_u32 s2, 256\ns_cbranch_scc1 END")
    stamp(0)
    for n in ["wmod", "wq", "ckv", "ws", "c", "wuk", "x", "dbg", "wuv", "wo", "w1", "w2", "b1", "b2", "out"]:
        a(f"s_load_dwordx2 s[{SRD[n]}:{SRD[n]+1}], s[0:1], {KOFF[n]}")
    a("v_lshrrev_b32 v3, 6, v0\nv_and_b32 v1, 63, v0\nv_and_b32 v2, 15, v0")
    a(f"v_readfirstlane_b32 s{sW}, v3")
    a("v_lshrrev_b32 v3, 4, v1")
    for n in SRD:
        a(f"s_mov_b32 s{SRD[n]+2}, {SIZES[n]}\ns_mov_b32 s{SRD[n]+3}, 0x00020000")
    a(f"s_and_b32 s{sX}, s2, 7\ns_bfe_u32 s{sB}, s2, 0x10003\ns_lshr_b32 s{sP}, s2, 4\ns_mov_b32 s{sIT}, 0")
    a(f"s_lshl_b32 s{sT0}, s{sX}, 4\ns_add_u32 s{sT0}, s{sT0}, s{sP}\ns_lshl_b32 s{sCK}, s{sT0}, 17")
    a(f"s_lshl_b32 s{sT0}, s{sW}, 14\ns_add_u32 s{sCK}, s{sCK}, s{sT0}\ns_add_u32 s{sKVW}, s{sT0}, {KV}")
    a(f"s_and_b32 s{sSZW}, s{sW}, 1\ns_and_b32 s{sT0}, s{sW}, 2\ns_lshl_b32 s{sT0}, s{sT0}, 1\ns_or_b32 s{sSZW}, s{sSZW}, s{sT0}")
    a(f"s_and_b32 s{sT0}, s{sW}, 4\ns_lshr_b32 s{sT0}, s{sT0}, 1\ns_or_b32 s{sSZW}, s{sSZW}, s{sT0}")
    a("v_and_b32 v36, 2, v3\nv_add_u32 v36, v36, v3\nv_xor_b32 v36, v36, v2\nv_lshlrev_b32 v36, 4, v36")
    a("v_lshl_add_u32 v12, v3, 10, v36")
    for g in range(1, 4):
        a(f"v_xor_b32 v{12+g}, {((g&1)*32)|((g>>1)*128)|(g*4096)}, v12")
    a(f"s_cmp_eq_u32 s{sW}, 7\ns_cselect_b32 s{sE0}, 3, 0\ns_mov_b32 s{sE0+1}, 0")
    a("v_lshlrev_b32 v62, 7, v1\nv_mov_b32 v63, 0x1000")
    def late_common():
        a("v_and_b32 v37, 9, v2\nv_and_b32 v38, 2, v2\nv_lshl_or_b32 v37, v38, 1, v37\nv_bfe_u32 v38, v2, 2, 1\nv_lshl_or_b32 v37, v38, 1, v37")
        a("v_xor_b32 v38, v37, v3\nv_lshlrev_b32 v38, 4, v38\nv_lshl_or_b32 v4, v2, 8, v38")
        for t in range(1, 4): a(f"v_xor_b32 v{4+t}, {t<<6}, v4")
        for t in range(4): a(f"v_add_u32 v{8+t}, s{sKVW}, v{4+t}")
        a("v_and_b32 v38, 1, v2\nv_lshlrev_b32 v38, 4, v38\nv_mov_b32 v39, 0xffff\nv_lshlrev_b32 v39, v38, v39\nv_bfe_u32 v38, v2, 1, 2")
        for r in range(4):
            a(f"v_cmp_eq_u32 vcc, {r}, v38\nv_cndmask_b32 v{32+r}, 0, v39, vcc")
        a(f"s_lshl_b32 s{sT0}, s{sW}, 1\nv_lshrrev_b32 v38, 1, v3\nv_or_b32 v38, s{sT0}, v38\nv_xor_b32 v38, v38, v37")
        a("v_lshlrev_b32 v38, 4, v38\nv_lshl_or_b32 v38, v2, 8, v38\nv_and_b32 v39, 1, v3\nv_lshl_or_b32 v61, v39, 3, v38")
    late_common()
    def c_addr(dst):
        a(f"v_lshrrev_b32 v{dst}, 3, v2\nv_lshlrev_b32 v{dst}, 10, v{dst}\nv_lshl_or_b32 v{dst}, v3, 3, v{dst}")
    def silu_onehot(cr, A, t):
        a(f"v_lshlrev_b32 v{t}, 16, v{cr}\nv_and_b32 v{t+1}, 0xffff0000, v{cr}\nv_lshlrev_b32 v{t+2}, 16, v{cr+1}\nv_and_b32 v{t+3}, 0xffff0000, v{cr+1}")
        for i in range(4): a(f"v_mul_f32 v{t+4+i}, {hex(f2u(-LOG2E))}, v{t+i}")
        for i in range(4): a(f"v_exp_f32 v{t+4+i}, v{t+4+i}")
        for i in range(4): a(f"v_add_f32 v{t+4+i}, 1.0, v{t+4+i}")
        for i in range(4): a(f"v_rcp_f32 v{t+4+i}, v{t+4+i}")
        for i in range(4): a(f"v_mul_f32 v{t+i}, v{t+i}, v{t+4+i}")
        for i in range(4): a(f"v_cvt_pk_bf16_f32 v{t+i}, v{t+i}, v{t+i}")
        for i in range(4):
            for r in range(4): a(f"v_and_b32 v{A+4*i+r}, v{t+i}, v{32+r}")
    def mod_reduce(W, A):
        for i in range(4): mfma(208, A + 4 * i, W + 4 * i, "0" if i == 0 else None)
        a(f"s_lshl_b32 s{sT0}, s{sW}, 10\nv_lshlrev_b32 v44, 4, v1\nv_add_u32 v45, s{sT0}, v44")
        a(f"ds_write_b128 v45, v[208:211] offset:{RED}\ns_waitcnt lgkmcnt(0)\ns_barrier")
    def sum8(addr, base, stride, buf, n=8):
        for k in range(n): a(f"ds_read_b128 {vr(buf+4*k,4)}, v{addr} offset:{base+k*stride}")
        for k in range(0, n, 2):
            a(f"s_waitcnt lgkmcnt({n-2-k})")
            for hlf in (0, 2): a(f"v_pk_add_f32 {vr(buf+4*k+hlf,2)}, {vr(buf+4*k+hlf,2)}, {vr(buf+4*k+4+hlf,2)}")
            if k:
                for hlf in (0, 2): a(f"v_pk_add_f32 {vr(buf+hlf,2)}, {vr(buf+hlf,2)}, {vr(buf+4*k+hlf,2)}")

    a(f"s_cmp_eq_u32 s{sB}, 1\ns_cbranch_scc1 BPATH")
    a("v_mov_b32 v40, -1\nv_mov_b32 v41, -1\nv_mov_b32 v42, -1\nv_mov_b32 v43, -1")
    a(f"s_cmp_ge_u32 s{sP}, 4\ns_cbranch_scc1 A_NOS1")
    c_addr(46)
    a("v_and_b32 v47, 7, v2\nv_lshlrev_b32 v47, 4, v47\nv_lshrrev_b32 v48, 3, v2\nv_lshl_or_b32 v48, v48, 10, v47")
    a("v_mul_u32_u24 v49, 24576, v3\nv_add_u32 v48, v48, v49")
    a("v_and_b32 v49, 1, v3\nv_lshl_or_b32 v47, v49, 3, v47\nv_lshrrev_b32 v49, 1, v3")
    a("v_lshl_or_b32 v50, v49, 12, v47\nv_lshl_or_b32 v51, v49, 10, v47\nv_lshlrev_b32 v52, 5, v1")
    a(f"s_lshl_b32 s{sT0}, s{sP}, 3\ns_add_u32 s{sT0}, s{sT0}, s{sW}\ns_lshl_b32 s{sT1}, s{sT0}, 5")
    a(f"s_mul_i32 s{sT0}, s{sT0}, {16*6144}\ns_lshl_b32 s{sT2}, s{sX}, 7\ns_add_u32 s{sT0}, s{sT0}, s{sT2}")
    a(f"s_lshl_b32 s{sT3}, s{sP}, 10\ns_add_u32 s{sT3}, s{sT3}, s{sT2}")
    a(f"s_cmp_eq_u32 s{sW}, 1\ns_cselect_b32 exec_lo, 0x00ff00ff, 0\ns_cselect_b32 exec_hi, 0x00ff00ff, 0")
    a("s_waitcnt lgkmcnt(0)")
    a(f"buffer_store_dwordx2 v[40:41], v50, {R('ws')}, s{sT3} offen sc1")
    exec_all()
    a(f"buffer_load_dwordx2 v[36:37], v46, {R('c')}, s{sT1} offen")
    for i in range(4):
        a(f"buffer_load_dwordx4 {vr(64+4*i,4)}, v48, {R('wmod')}, s{sT0} offen nt")
        if i < 3: a(f"s_add_u32 s{sT0}, s{sT0}, 6144")
    a(f"s_cmp_eq_u32 s{sW}, 0\ns_cselect_b64 exec, -1, 0")
    a(f"buffer_load_dwordx4 v[80:83], v52, {R('x')}, 0 offen\nbuffer_load_dwordx4 v[84:87], v52, {R('x')}, 0 offen offset:16")
    a(f"buffer_load_dwordx2 v[88:89], v51, {R('x')}, s{sT2} offen")
    exec_all()
    for k in range(NPRE): ckv_dma(k)
    a(f"s_waitcnt vmcnt({7+NPRE})")
    a(f"s_cmp_eq_u32 s{sW}, 1\ns_cselect_b64 exec, 1, 0\nv_mov_b32 v53, 1\nv_mov_b32 v54, 0")
    exec_all()
    a("v_mov_b32 v53, 1\nv_mov_b32 v54, 0")
    a(f"s_cselect_b64 exec, 1, 0")
    a(f"buffer_atomic_add v53, v54, {R('dbg')}, 0 offen sc1")
    exec_all()
    silu_onehot(36, 128, 96)
    a(f"s_waitcnt vmcnt({1+NPRE})")
    a(f"s_cmp_lg_u32 s{sW}, 0\ns_cbranch_scc1 S1_NOLN")
    for i in range(8):
        a(f"v_lshlrev_b32 v{96+2*i}, 16, v{80+i}\nv_and_b32 v{97+2*i}, 0xffff0000, v{80+i}")
    a("v_pk_add_f32 v[112:113], v[96:97], v[98:99]")
    for i in range(2, 8): a(f"v_pk_add_f32 v[112:113], v[112:113], {vr(96+2*i,2)}")
    a("v_add_f32 v112, v112, v113")
    def red32(r, t):
        red_dpp("v_add_f32", [r], R16)
        a(f"v_mov_b32 v{t}, v{r}\nv_permlane16_swap_b32 v{r}, v{t}\nv_add_f32 v{r}, v{r}, v{t}")
    red32(112, 113)
    a(f"v_mul_f32 v112, {hex(f2u(1/512))}, v112")
    for i in range(16): a(f"v_sub_f32 v{96+i}, v{96+i}, v112")
    a("v_mul_f32 v114, v96, v96")
    for i in range(1, 16): a(f"v_fmac_f32 v114, v{96+i}, v{96+i}")
    red32(114, 113)
    a(f"v_mov_b32 v113, {hex(f2u(1e-5))}\nv_fmac_f32 v113, {hex(f2u(1/512))}, v114\nv_rsq_f32 v113, v113")
    a("v_lshlrev_b32 v116, 16, v88\nv_and_b32 v117, 0xffff0000, v88\nv_lshlrev_b32 v118, 16, v89\nv_and_b32 v119, 0xffff0000, v89")
    for i in range(4): a(f"v_sub_f32 v{116+i}, v{116+i}, v112\nv_mul_f32 v{116+i}, v{116+i}, v113")
    a(f"s_cmp_eq_u32 s{sP}, 0\ns_cselect_b32 s{sT0}, 1.0, 0\nv_mov_b32 v120, s{sT0}")
    a("S1_NOLN:")
    mod_reduce(64, 128)
    a(f"s_cmp_lg_u32 s{sW}, 0\ns_cbranch_scc1 S1_DONE")
    sum8(44, RED, 1024, 64)
    for i in range(4): a(f"v_add_f32_dpp v{68+i}, v{64+i}, v120 row_ror:8 {FULL}")
    for i in range(4): a(f"v_fmac_f32 v{64+i}, v{68+i}, v{116+i}")
    a("v_cvt_pk_bf16_f32 v64, v64, v65\nv_cvt_pk_bf16_f32 v65, v66, v67")
    exec_set("0x00ff00ff", "0x00ff00ff")
    a(f"buffer_store_dwordx2 v[64:65], v50, {R('ws')}, s{sT3} offen sc1")
    exec_all()
    a("S1_DONE:")
    stamp(1)
    a("s_barrier\ns_branch A2")
    a("A_NOS1:")
    a(f"s_cmp_ge_u32 s{sP}, 9\ns_cbranch_scc1 A_PLAIN")
    a(f"s_lshl_b32 s{sT0}, s{sP}, 3\ns_add_u32 s{sT0}, s{sT0}, s{sX}\ns_lshl_b32 s{sT0}, s{sT0}, 13\ns_add_u32 s{sT0}, s{sT0}, {H3-32*8192 & 0xffffffff}")
    a("v_lshlrev_b32 v44, 4, v0\nv_mov_b32 v53, 1\nv_mov_b32 v54, 128\ns_waitcnt lgkmcnt(0)")
    a(f"buffer_store_dwordx4 v[40:43], v44, {R('ws')}, s{sT0} offen sc1")
    for k in range(NPRE): ckv_dma(k)
    a(f"s_waitcnt vmcnt({NPRE})\ns_barrier")
    a(f"s_cmp_eq_u32 s{sW}, 0\ns_cselect_b64 exec, 1, 0")
    a(f"buffer_atomic_add v53, v54, {R('dbg')}, 0 offen sc1")
    exec_all()
    a("s_branch A2")
    a("A_PLAIN:")
    a("s_waitcnt lgkmcnt(0)")
    for k in range(NPRE): ckv_dma(k)
    a("A2:")
    def cnt_load():
        a(f"s_mov_b64 exec, s[{sE0}:{sE0+1}]\nbuffer_load_dword v63, v62, {R('dbg')}, 0 offen sc1")
        exec_all()
    def cnt_check(both, tag):
        a(f"{tag}_CK:")
        a(f"v_readlane_b32 s{sT0}, v63, 1\nv_readlane_b32 s{sT1}, v63, 0")
        if both: a(f"s_add_u32 s{sT1}, s{sT1}, 8\ns_min_u32 s{sT0}, s{sT0}, s{sT1}")
        a(f"s_cmp_ge_u32 s{sT0}, 40\ns_cbranch_scc1 {tag}_OK")
        cnt_load()
        a(f"s_add_u32 s{sIT}, s{sIT}, 1\ns_cmp_lt_u32 s{sIT}, {SPIN}\ns_waitcnt vmcnt(0)\ns_cbranch_scc1 {tag}_CK")
        a(f"{tag}_OK:")
    for k in range(NPRE, 8): ckv_dma(k)
    cnt_load()
    for k in range(8, 16): ckv_dma(k)
    a(f"s_cmp_lg_u32 s{sW}, 7\ns_cbranch_scc1 AC_OK\ns_waitcnt vmcnt(8)")
    cnt_check(False, "AC")
    a("s_barrier\ns_branch S5")

    a("BPATH:")
    a(f"s_lshl_b32 s{sH}, s{sX}, 2\ns_lshr_b32 s{sT0}, s{sP}, 2\ns_add_u32 s{sH}, s{sH}, s{sT0}\ns_and_b32 s{sCQ}, s{sP}, 3")
    a("v_lshlrev_b32 v44, 4, v2\nv_lshl_or_b32 v44, v3, 16, v44")
    a(f"s_lshl_b32 s{sT0}, s{sW}, 19\ns_lshl_b32 s{sT1}, s{sH}, 8\ns_add_u32 s{sT0}, s{sT0}, s{sT1}")
    a(f"s_lshl_b32 s{sT2}, s{sCQ}, 17\ns_and_b32 s{sT2}, s{sT2}, 0x40000\ns_add_u32 s{sT0}, s{sT0}, s{sT2}")
    a(f"s_lshl_b32 s{sT2}, s{sCQ}, 3\ns_add_u32 s{sT2}, s{sT2}, s{sW}\ns_lshl_b32 s{sT2}, s{sT2}, 17\ns_add_u32 s{sT1}, s{sT1}, s{sT2}")
    a("v_lshl_add_u32 v48, v3, 13, v36")
    for g in range(1, 4): a(f"v_xor_b32 v{48+g}, {((g&1)*32)|((g>>1)*128)|(g*32768)}, v48")
    a(f"s_lshl_b32 s{sT2}, s{sH}, 2\ns_add_u32 s{sT2}, s{sT2}, s{sCQ}")
    a("v_lshlrev_b32 v45, 4, v0\nv_mov_b32 v40, -1\nv_mov_b32 v41, -1\nv_mov_b32 v42, -1\nv_mov_b32 v43, -1")
    a(f"s_and_b32 s{sT3}, s{sCQ}, 1\ns_cmp_eq_u32 s{sT3}, 1")
    a("s_waitcnt lgkmcnt(0)\ns_cbranch_scc1 BQ1")
    def wq_issue(rot):
        def ld(g, r):
            r ^= rot
            a(f"s_xor_b32 s{sT3}, s{sT0}, {g*262144+r*8192}")
            a(f"buffer_load_dwordx4 {vr(64+32*g+4*r,4)}, v44, {R('wq')}, s{sT3} offen")
        for r in range(4): ld(0, r)
        for g in range(4):
            a(f"s_add_u32 m0, s{sKVW}, {g*1024}")
            a(f"buffer_load_dwordx4 v{48+g}, {R('wuk')}, s{sT1} offen nt lds")
        a(f"s_lshl_b32 s{sT3}, s{sT2}, 15\ns_add_u32 s{sT3}, s{sT3}, {H4}")
        for i in range(4):
            a(f"buffer_store_dwordx4 v[40:43], v45, {R('ws')}, s{sT3} offen sc1")
            if i < 3: a(f"s_add_u32 s{sT3}, s{sT3}, 8192")
        a(f"s_lshl_b32 s{sT3}, s{sT2}, 8\ns_add_u32 s{sT3}, s{sT3}, {ML}")
        a(f"s_cmp_eq_u32 s{sW}, 0\ns_cselect_b64 exec, 0xffff, 0")
        a(f"buffer_store_dwordx4 v[40:43], v45, {R('ws')}, s{sT3} offen sc1")
        exec_all()
        for r in range(4, 8): ld(0, r)
        for r in range(4): ld(1, r)
        cnt_load()
        for r in range(4, 8): ld(1, r)
    wq_issue(0)
    a("s_branch BQ2\nBQ1:")
    wq_issue(4)
    a("BQ2:")
    a("v_and_b32 v46, 7, v2\nv_lshlrev_b32 v46, 10, v46\nv_lshl_or_b32 v46, v3, 4, v46")
    a(f"s_lshl_b32 s{sT2}, s{sW}, 7\ns_lshl_b32 s{sT3}, s{sCQ}, 5\ns_and_b32 s{sT3}, s{sT3}, 64\ns_or_b32 s{sT2}, s{sT2}, s{sT3}\ns_xor_b32 s{sT3}, s{sT2}, 64")
    a(f"v_and_b32 v47, 1, v3\nv_lshlrev_b32 v47, 3, v47\nv_or_b32 v52, s{sSZW}, v47\nv_xor_b32 v52, v52, v2\nv_or_b32 v47, s{sW}, v47")
    a("v_lshlrev_b32 v47, 8, v47\nv_lshl_or_b32 v47, v52, 4, v47")
    a("v_lshrrev_b32 v53, 3, v2\nv_lshlrev_b32 v53, 15, v53\nv_lshl_or_b32 v53, v3, 3, v53")
    a("s_mov_b32 s100, 0x05040100\ns_mov_b32 s101, 0x07060302")
    def transpose(g):
        for j in range(8):
            for rho in range(4):
                a(f"v_perm_b32 v{128+32*g+4*j+rho}, v{64+32*g+4*(2*rho+1)+(j>>1)}, v{64+32*g+4*(2*rho)+(j>>1)}, s{100+(j&1)}")
    a("s_waitcnt vmcnt(9)")
    for t in range(4): a(f"ds_read_b128 {vr(192+4*t,4)}, v{8+t}")
    transpose(0)
    a("s_waitcnt vmcnt(0)")
    stamp(1)
    cnt_check(True, "BC")
    a("s_barrier")
    def h1_loads():
        a(f"buffer_load_dwordx4 v[36:39], v46, {R('ws')}, s{sT2} offen sc1\nbuffer_load_dwordx4 v[40:43], v46, {R('ws')}, s{sT3} offen sc1")
    h1_loads()
    transpose(1)
    a("s_branch H1W\nH1L:")
    h1_loads()
    a("H1W:\ns_waitcnt vmcnt(0)")
    check([37, 39, 41, 43], 52, "H1L", "H1OK")
    a("H1OK:")
    stamp(2)
    for g in range(2):
        for j in range(8): mfma(208 + 4 * j, 36 + 4 * g, 128 + 32 * g + 4 * j, "0" if g == 0 else None)
    a("s_waitcnt lgkmcnt(0)")
    for k in range(NPREB): ckv_dma(15 - k)
    for j in range(8):
        a(f"v_pk_add_f32 {vr(208+4*j,2)}, {vr(208+4*j,2)}, {vr(210+4*j,2)}")
    for j in range(8): a(f"v_add_f32 v{208+4*j}, v{208+4*j}, v{209+4*j}")
    for j in range(4): a(f"v_cvt_pk_bf16_f32 v{56+j}, v{208+8*j}, v{212+8*j}")
    a("s_mov_b32 exec_hi, 0")
    a(f"ds_write_b128 v47, v[56:59] offset:{PB}")
    exec_all()
    a("s_waitcnt lgkmcnt(0)\ns_barrier")
    for t in range(4): a(f"ds_read_b128 {vr(64+4*t,4)}, v{4+t} offset:{PB}")
    a(f"s_lshl_b32 s{sT0}, s{sH}, 10\ns_lshl_b32 s{sT1}, s{sCQ}, 8\ns_add_u32 s{sT0}, s{sT0}, s{sT1}\ns_lshl_b32 s{sT1}, s{sW}, 5\ns_add_u32 s{sT0}, s{sT0}, s{sT1}\ns_add_u32 s{sT0}, s{sT0}, {H3}")
    for t in range(4):
        a(f"s_waitcnt lgkmcnt({3-t})")
        mfma(208, 192 + 4 * t, 64 + 4 * t, "0" if t == 0 else None)
    red_dpp("v_add_f32", [208, 209, 210, 211], R8)
    for i in range(4): a(f"v_mul_f32 v{208+i}, {hex(f2u(128**-0.5*LOG2E))}, v{208+i}")
    a("v_cvt_pk_bf16_f32 v208, v208, v209\nv_cvt_pk_bf16_f32 v209, v210, v211")
    exec_set("0x01010101", "0x01010101")
    a(f"buffer_store_dwordx2 v[208:209], v53, {R('ws')}, s{sT0} offen sc1")
    exec_all()
    for k in range(NPREB, 16): ckv_dma(15 - k)

    a("S5:")
    stamp(3)
    a(f"s_lshr_b32 s{sT0}, s{sX}, 2\ns_lshl_b32 s{sT0}, s{sT0}, 1\ns_add_u32 s{sT0}, s{sT0}, s{sB}\ns_lshl_b32 s{sT0}, s{sT0}, 3\ns_add_u32 s{sT0}, s{sT0}, s{sW}")
    a(f"s_lshl_b32 s{sT0}, s{sT0}, 11\ns_add_u32 s{sT0}, s{sT0}, {H3}")
    a("v_lshlrev_b32 v44, 4, v1")
    def h3_loads():
        a(f"buffer_load_dwordx4 v[36:39], v44, {R('ws')}, s{sT0} offen sc1\nbuffer_load_dwordx4 v[40:43], v44, {R('ws')}, s{sT0} offen offset:1024 sc1")
    h3_loads()
    a(f"s_and_b32 s{sB6}, s{sP}, 1\ns_bfe_u32 s{sCQ}, s{sP}, 0x20001\ns_lshl_b32 s{sH}, s{sB}, 3\ns_add_u32 s{sH}, s{sH}, s{sX}\ns_lshl_b32 s{sH}, s{sH}, 1\ns_lshr_b32 s{sT1}, s{sP}, 3\ns_add_u32 s{sH}, s{sH}, s{sT1}")
    a(f"s_and_b32 s{sT1}, s{sW}, 1\ns_lshl_b32 s{sT1}, s{sT1}, 2\ns_and_b32 s{sT2}, s{sW}, 2\ns_or_b32 s{sT1}, s{sT1}, s{sT2}\ns_and_b32 s{sT2}, s{sW}, 4\ns_lshl_b32 s{sT2}, s{sT2}, 1\ns_or_b32 s{sT1}, s{sT1}, s{sT2}")
    a(f"v_xor_b32 v45, s{sT1}, v2\nv_lshlrev_b32 v45, 4, v45\nv_lshl_or_b32 v45, v3, 12, v45\ns_lshl_b32 s{sT1}, s{sW}, 9\nv_or_b32 v45, s{sT1}, v45\nv_xor_b32 v46, 0x110, v45")
    a("v_lshrrev_b32 v47, 2, v2\nv_and_b32 v48, 3, v2\nv_and_b32 v49, 1, v3")
    a("v_and_b32 v50, 2, v47\nv_add_u32 v50, v50, v47\nv_xor_b32 v50, v50, v48")
    a(f"s_and_b32 s{sT1}, s{sW}, 1\nv_xor_b32 v51, s{sT1}, v49\nv_lshl_or_b32 v50, v51, 3, v50\nv_lshlrev_b32 v50, 4, v50")
    a("v_and_b32 v51, 1, v48\nv_lshl_or_b32 v50, v51, 3, v50")
    a("v_lshl_or_b32 v51, v49, 3, v47\nv_lshl_or_b32 v50, v51, 8, v50\nv_lshrrev_b32 v51, 1, v3\nv_lshl_or_b32 v50, v51, 14, v50")
    a(f"s_lshr_b32 s{sT1}, s{sW}, 1\ns_lshl_b32 s{sT1}, s{sT1}, 12\ns_add_u32 s{sT1}, s{sT1}, {KV}\nv_add_u32 v16, s{sT1}, v50")
    for i in range(4):
        for hh in range(2):
            if i or hh: a(f"v_xor_b32 v{16+2*i+hh}, {(hh*(1024|32))|((i>>1)*64)|((i&1)*8)}, v16")
    for k in range(8): a(f"v_add_u32 v{24+k}, 0x10000, v{16+k}")
    a("v_lshlrev_b32 v47, 4, v2\nv_lshl_or_b32 v47, v3, 13, v47")
    a(f"s_lshl_b32 s{sT1}, s{sCQ}, 3\ns_add_u32 s{sT1}, s{sT1}, s{sW}\ns_lshl_b32 s{sT1}, s{sT1}, 1\ns_add_u32 s{sT1}, s{sT1}, s{sB6}\ns_lshl_b32 s{sT1}, s{sT1}, 16\ns_lshl_b32 s{sT2}, s{sH}, 8\ns_add_u32 s{sT1}, s{sT1}, s{sT2}")
    a(f"v_lshlrev_b32 v49, 5, v2\ns_lshl_b32 s{sT2}, s{sW}, 2\nv_add_u32 v48, s{sT2}, v49")
    a("v_lshlrev_b32 v50, 10, v2\nv_lshl_or_b32 v50, v3, 4, v50\nv_lshlrev_b32 v51, 3, v2")
    for i in range(4): a(f"v_mov_b32 v{232+i}, 0x3f803f80")
    a("s_waitcnt vmcnt(2)")
    for t in range(16): a(f"ds_read_b128 {vr(64+4*t,4)}, v{8+(t&3)} offset:{(t>>2)*4096}")
    a("s_branch H3W\nH3L:")
    h3_loads()
    a("H3W:\ns_waitcnt vmcnt(0)")
    check([37, 39, 41, 43], 52, "H3L", "H3OK")
    a("H3OK:")
    stamp(4)
    a(f"ds_write_b128 v45, v[36:39] offset:{QL}\nds_write_b128 v46, v[40:43] offset:{QL}")
    for g in range(4):
        a(f"s_xor_b32 s{sT2}, s{sT1}, {g*32768}")
        a(f"buffer_load_dwordx4 {vr(192+4*g,4)}, v47, {R('wuv')}, s{sT2} offen")
    a("s_waitcnt lgkmcnt(0)\ns_barrier")
    for t in range(16): a(f"ds_read_b128 {vr(128+4*t,4)}, v{4+(t&3)} offset:{QL+(t>>2)*4096}")
    a(f"s_lshl_b32 s{sT2}, s{sB}, 3\ns_add_u32 s{sT2}, s{sT2}, s{sX}\ns_lshl_b32 s{sT2}, s{sT2}, 4\ns_add_u32 s{sT2}, s{sT2}, s{sP}")
    a(f"s_lshl_b32 s{sT3}, s{sT2}, 7\ns_add_u32 s{sT3}, s{sT3}, {ML}\ns_lshl_b32 s{sT2}, s{sT2}, 14\ns_lshl_b32 s{sT1}, s{sW}, 7\ns_add_u32 s{sT2}, s{sT2}, s{sT1}\ns_add_u32 s{sT2}, s{sT2}, {H4}")
    for t in range(16):
        a(f"s_waitcnt lgkmcnt({15-t})")
        mfma(224, 64 + 4 * t, 128 + 4 * t, "0" if t == 0 else None)
    a("v_max3_f32 v52, v224, v225, v226\nv_max_f32 v52, v52, v227")
    red_s("v_max_f32", [52], [53])
    exec_set("0xffff", "0")
    a(f"ds_write_b32 v48, v52 offset:{MX}")
    exec_all()
    a("s_waitcnt lgkmcnt(0)\ns_barrier")
    a(f"ds_read_b128 v[36:39], v49 offset:{MX}\nds_read_b128 v[40:43], v49 offset:{MX+16}")
    def vread(u, i):
        for hh in range(2):
            a(f"ds_read_b64_tr_b16 {vr(64+16*u+4*i+2*hh,2)}, v{16+8*(u>>1)+2*i+hh} offset:{(u&1)*32768}")
    a("s_waitcnt lgkmcnt(1)\nv_max3_f32 v52, v36, v37, v38\ns_waitcnt lgkmcnt(0)\nv_max3_f32 v53, v39, v40, v41\nv_max3_f32 v52, v52, v42, v43\nv_max_f32 v52, v52, v53")
    for i in range(4): a(f"v_sub_f32 v{224+i}, v{224+i}, v52")
    for i in range(4): a(f"v_exp_f32 v{224+i}, v{224+i}")
    a("v_cvt_pk_bf16_f32 v224, v224, v225\nv_cvt_pk_bf16_f32 v225, v226, v227")
    a(f"ds_write_b64 v61, v[224:225] offset:{PB}")
    for i in range(4): vread(0, i)
    a("s_waitcnt lgkmcnt(8)\ns_barrier")
    for u in range(4): a(f"ds_read_b128 {vr(128+4*u,4)}, v{4+u} offset:{PB}")
    a(f"s_cmp_lg_u32 s{sW}, 0\ns_cbranch_scc1 NOL")
    a("s_waitcnt lgkmcnt(0)")
    for u in range(4): mfma(228, 232, 128 + 4 * u, "0" if u == 0 else None)
    a("NOL:")
    for i in range(4): vread(1, i)
    for u in range(4):
        for i in range(4):
            if u == 0:
                if i == 0: a("s_waitcnt lgkmcnt(8)")
                vread(2, i)
            elif u == 1:
                a("s_waitcnt lgkmcnt(14)");
            else:
                a(f"s_waitcnt lgkmcnt({min(15, 2*(15-(4*u+i)))})")
            mfma(208 + 4 * i, 64 + 16 * u + 4 * i, 128 + 4 * u, "0" if u == 0 else None)
            if u == 1: vread(3, i)
            if u == 1 and i == 0:
                a("v_mov_b32 v53, v228")
                a(f"s_cmp_eq_u32 s{sW}, 0\ns_cselect_b64 exec, 0xffff, 0")
                a(f"buffer_store_dwordx2 v[52:53], v51, {R('ws')}, s{sT3} offen sc1")
                exec_all()
    for i in range(4):
        a(f"v_cvt_pk_bf16_f32 v{144+2*i}, v{208+4*i}, v{209+4*i}\nv_cvt_pk_bf16_f32 v{145+2*i}, v{210+4*i}, v{211+4*i}")
        if i & 1: a(f"buffer_store_dwordx4 {vr(144+2*i-2,4)}, v50, {R('ws')}, s{sT2} offen offset:{(i>>1)*64} sc1")
    stamp(5)
    a(f"v_lshlrev_b32 v44, 1, v3\nv_xor_b32 v44, v44, v2\nv_lshlrev_b32 v44, 4, v44\nv_lshl_or_b32 v44, v3, 8, v44")
    a(f"s_lshl_b32 s{sT0}, s{sW}, 12\ns_add_u32 s{sT0}, s{sT0}, {KV}\ns_mul_i32 s{sT1}, s{sB6}, {2048|128}\nv_xor_b32 v44, s{sT1}, v44\nv_add_u32 v44, s{sT0}, v44\nv_xor_b32 v45, {2048|128}, v44")
    a("v_lshrrev_b32 v46, 3, v1\nv_and_b32 v47, 2, v46\nv_and_b32 v54, 7, v1\nv_xor_b32 v54, v54, v47\nv_lshlrev_b32 v54, 4, v54\nv_lshl_or_b32 v54, v46, 10, v54\nv_xor_b32 v55, 64, v54")
    a("v_lshrrev_b32 v46, 2, v1\nv_and_b32 v47, 2, v3\nv_and_b32 v56, 3, v1\nv_xor_b32 v56, v56, v47\nv_lshlrev_b32 v56, 4, v56\nv_mul_u32_u24 v46, 3584, v46\nv_add_u32 v56, v56, v46")
    a("v_mul_u32_u24 v57, 24576, v3\nv_lshl_add_u32 v57, v2, 4, v57")
    c_addr(58)
    a("s_barrier\ns_waitcnt vmcnt(3)")
    for g in range(4): a(f"ds_write_b128 v{44+(g>>1)}, {vr(192+4*g,4)} offset:{(g&1)*1024}")
    a(f"s_lshl_b32 s{sKVW}, s{sW}, 12\ns_add_u32 s{sKVW}, s{sKVW}, {B2L}")
    a(f"s_cmp_eq_u32 s{sB}, 1\ns_cbranch_scc1 B2_B")
    a(f"s_lshl_b32 s{sT0}, s{sX}, 1\ns_lshr_b32 s{sT1}, s{sP}, 3\ns_add_u32 s{sT0}, s{sT0}, s{sT1}\ns_lshl_b32 s{sT0}, s{sT0}, 3\ns_add_u32 s{sT0}, s{sT0}, s{sW}\ns_lshl_b32 s{sT0}, s{sT0}, 15")
    a(f"s_and_b32 s{sT1}, s{sP}, 7\ns_lshl_b32 s{sT1}, s{sT1}, 7\ns_add_u32 s{sT0}, s{sT0}, s{sT1}")
    for g in range(4):
        a(f"s_add_u32 m0, s{sKVW}, {g*1024}")
        if g: a(f"s_add_u32 s{sT0}, s{sT0}, 8192")
        a(f"buffer_load_dwordx4 v{54+(g&1)}, {R('wo')}, s{sT0} offen nt lds")
    a("s_branch B2_DONE\nB2_B:")
    a(f"s_cmp_ge_u32 s{sP}, 8\ns_cbranch_scc1 B2_HM")
    a(f"s_cmp_eq_u32 s{sX}, 7\ns_cbranch_scc1 B2_DONE")
    def w1_dma(half):
        a(f"s_and_b32 s{sT1}, s{sP}, 1")
        if half: a(f"s_xor_b32 s{sT1}, s{sT1}, 1")
        a(f"s_lshl_b32 s{sT0}, s{sW}, 1\ns_add_u32 s{sT0}, s{sT0}, s{sT1}\ns_mul_i32 s{sT0}, s{sT0}, {32*3584}")
        a(f"s_lshl_b32 s{sT2}, s{sX}, 3\ns_add_u32 s{sT2}, s{sT2}, s{sP}\ns_lshl_b32 s{sT2}, s{sT2}, 6\ns_add_u32 s{sT0}, s{sT0}, s{sT2}")
        a(f"s_lshl_b32 s{sT1}, s{sT1}, 11\ns_add_u32 m0, s{sKVW}, s{sT1}")
        a(f"buffer_load_dwordx4 v56, {R('w1')}, s{sT0} offen lds")
        a(f"s_add_u32 m0, m0, 1024\ns_add_u32 s{sT0}, s{sT0}, {16*3584}")
        a(f"buffer_load_dwordx4 v56, {R('w1')}, s{sT0} offen lds")
    w1_dma(0)
    a("s_branch B2_DONE\nB2_HM:")
    a(f"s_and_b32 s{sT0}, s{sP}, 3\ns_lshl_b32 s{sT0}, s{sT0}, 3\ns_add_u32 s{sT0}, s{sT0}, s{sW}\ns_lshl_b32 s{sT1}, s{sT0}, 5\ns_mul_i32 s{sT0}, s{sT0}, {16*6144}")
    a(f"s_lshl_b32 s{sT2}, s{sX}, 1\ns_bfe_u32 s{sT3}, s{sP}, 0x10002\ns_add_u32 s{sT2}, s{sT2}, s{sT3}\ns_lshl_b32 s{sT2}, s{sT2}, 8\ns_add_u32 s{sT0}, s{sT0}, s{sT2}\ns_add_u32 s{sT0}, s{sT0}, 2048")
    a(f"buffer_load_dwordx2 v[112:113], v58, {R('c')}, s{sT1} offen")
    for i in range(4):
        a(f"buffer_load_dwordx4 {vr(96+4*i,4)}, v57, {R('wmod')}, s{sT0} offen nt")
        if i < 3: a(f"s_add_u32 s{sT0}, s{sT0}, 6144")
    a("B2_DONE:")
    a("v_lshrrev_b32 v47, 2, v2\nv_and_b32 v48, 1, v3\nv_lshl_or_b32 v48, v48, 2, v47\nv_lshlrev_b32 v48, 1, v48")
    a(f"v_bfe_u32 v49, v2, 1, 1\ns_lshl_b32 s{sT0}, s{sW}, 1\nv_or_b32 v49, s{sT0}, v49\nv_xor_b32 v48, v48, v49\nv_lshlrev_b32 v48, 4, v48")
    a(f"v_and_b32 v49, 1, v2\nv_lshl_or_b32 v48, v49, 3, v48\nv_lshl_add_u32 v49, v3, 3, v47\nv_lshl_or_b32 v46, v49, 8, v48\nv_add_u32 v46, {KV}, v46")
    a("s_waitcnt lgkmcnt(0)\ns_barrier")
    for t in range(4):
        for hh in range(2): a(f"ds_read_b64_tr_b16 {vr(64+4*t+2*hh,2)}, v46 offset:{t*8192+hh*1024}")
    a("v_lshlrev_b32 v48, 4, v2\nv_lshl_or_b32 v48, v3, 14, v48\nv_lshlrev_b32 v49, 7, v3")
    a(f"s_lshl_b32 s{sT0}, s{sB}, 1\ns_add_u32 s{sT0}, s{sT0}, s{sB6}\ns_lshl_b32 s{sT0}, s{sT0}, 3\ns_add_u32 s{sT0}, s{sT0}, s{sW}")
    a(f"s_and_b32 s{sT3}, s{sH}, 15\ns_lshl_b32 s{sT2}, s{sT0}, 10\ns_lshl_b32 s{sT1}, s{sT3}, 3\ns_add_u32 s{sT2}, s{sT2}, s{sT1}\ns_add_u32 s{sT2}, s{sT2}, {ML}")
    a(f"s_lshl_b32 s{sT0}, s{sT0}, 17\ns_lshl_b32 s{sT3}, s{sT3}, 10\ns_add_u32 s{sT0}, s{sT0}, s{sT3}\ns_lshl_b32 s{sT3}, s{sCQ}, 8\ns_add_u32 s{sT0}, s{sT0}, s{sT3}\ns_add_u32 s{sT0}, s{sT0}, {H4}\ns_add_u32 s{sT1}, s{sT0}, 65536")
    a(f"v_xor_b32 v50, s{sSZW}, v2\nv_lshlrev_b32 v50, 4, v50\nv_xor_b32 v51, v2, v3\nv_and_b32 v51, 1, v51\nv_lshl_or_b32 v50, v51, 3, v50\ns_lshl_b32 s{sT3}, s{sW}, 8\nv_or_b32 v50, s{sT3}, v50")
    a(f"s_lshl_b32 s{sT3}, s{sW}, 3\nv_mov_b32 v51, s{sT3}\nv_and_b32 v59, 7, v2\nv_lshlrev_b32 v59, 3, v59\nv_lshlrev_b32 v60, 3, v3")
    a("s_waitcnt vmcnt(4)")
    stamp(6)
    a("H4L:")
    a(f"buffer_load_dwordx2 v[44:45], v49, {R('ws')}, s{sT2} offen sc1\nbuffer_load_dwordx2 v[46:47], v49, {R('ws')}, s{sT2} offen offset:512 sc1")
    a(f"buffer_load_dwordx4 v[36:39], v48, {R('ws')}, s{sT0} offen sc1\nbuffer_load_dwordx4 v[40:43], v48, {R('ws')}, s{sT1} offen sc1")
    a("s_waitcnt vmcnt(2)")
    a("v_max_f32 v52, v44, v46")
    red_s("v_max_f32", [52], [53])
    a("v_sub_f32 v80, v44, v52\nv_sub_f32 v81, v46, v52\nv_exp_f32 v80, v80\nv_exp_f32 v81, v81")
    a("v_cvt_pk_bf16_f32 v80, v80, v80\nv_cvt_pk_bf16_f32 v81, v81, v81")
    for i in range(2):
        for r in range(4): a(f"v_and_b32 v{84+4*i+r}, v{80+i}, v{32+r}")
    a("v_and_b32 v80, 0xffff0000, v80\nv_and_b32 v81, 0xffff0000, v81\nv_mul_f32 v53, v80, v45\nv_fmac_f32 v53, v81, v47")
    red_s("v_add_f32", [53], [82])
    a("s_waitcnt vmcnt(0)")
    mfma(208, 84, 36, "0"); mfma(208, 88, 40)
    check([39, 43, 45, 47], 82, "H4L", "H4OK")
    a("H4OK:")
    stamp(7)
    a("s_mov_b64 exec, 1")
    a(f"ds_write_b64 v51, v[52:53] offset:{MLW}")
    exec_set("-1", "0")
    a("v_cvt_pk_bf16_f32 v208, v208, v209\nv_cvt_pk_bf16_f32 v209, v210, v211")
    a(f"ds_write_b64 v50, v[208:209] offset:{PB}")
    exec_all()
    a("s_waitcnt lgkmcnt(0)\ns_barrier")
    a(f"ds_read_b64 v[52:53], v59 offset:{MLW}")
    for t in range(4): a(f"ds_read_b128 {vr(80+4*t,4)}, v{4+t} offset:{PB}")
    a(f"s_lshl_b32 s{sT0}, s{sH}, 1\ns_add_u32 s{sT0}, s{sT0}, s{sB6}\ns_lshl_b32 s{sT0}, s{sT0}, 2\ns_add_u32 s{sT0}, s{sT0}, s{sCQ}\ns_lshl_b32 s{sT0}, s{sT0}, 3\ns_add_u32 s{sT0}, s{sT0}, s{sW}\ns_lshl_b32 s{sT0}, s{sT0}, 5\ns_add_u32 s{sT0}, s{sT0}, {H4B}")
    a("s_waitcnt lgkmcnt(4)")
    a(f"v_max_f32_dpp v44, v52, v52 {R8[0]} {FULL}")
    for t in range(4):
        a(f"s_waitcnt lgkmcnt({3-t})")
        mfma(212, 64 + 4 * t, 80 + 4 * t, "0" if t == 0 else None)
        if t < 2: a(f"v_max_f32_dpp v44, v44, v44 {R8[t+1]} {FULL}")
        if t == 2: a("v_sub_f32 v44, v52, v44\nv_exp_f32 v44, v44")
    a("v_mul_f32 v53, v53, v44")
    red_dpp("v_add_f32", [53], R8)
    a("v_rcp_f32 v53, v53")
    for i in range(4): a(f"v_mul_f32 v{212+i}, v{212+i}, v44")
    red_dpp("v_add_f32", [212, 213, 214, 215], R8)
    for i in range(4): a(f"v_mul_f32 v{212+i}, v{212+i}, v53")
    a("v_cvt_pk_bf16_f32 v212, v212, v213\nv_cvt_pk_bf16_f32 v213, v214, v215")
    exec_set("0x00010001", "0x00010001")
    a(f"buffer_store_dwordx2 v[212:213], v60, {R('ws')}, s{sT0} offen sc1")
    exec_all()
    stamp(8)
    a("v_lshrrev_b32 v47, 2, v2\nv_and_b32 v48, 2, v47\nv_and_b32 v49, 1, v3\nv_lshl_or_b32 v48, v49, 2, v48\nv_bfe_u32 v49, v2, 1, 1\nv_or_b32 v48, v48, v49\nv_lshlrev_b32 v48, 4, v48")
    a(f"v_and_b32 v49, 1, v2\nv_lshl_or_b32 v48, v49, 3, v48\nv_lshl_add_u32 v50, v3, 3, v47\nv_lshl_or_b32 v44, v50, 7, v48\nv_add_u32 v44, s{sKVW}, v44")
    for i in range(1, 4): a(f"v_xor_b32 v{44+i}, {i<<5}, v44")
    a(f"s_cmp_eq_u32 s{sB}, 1\ns_cbranch_scc1 LATE_B")
    for i in range(4):
        for hh in range(2): a(f"ds_read_b64_tr_b16 {vr(64+4*i+2*hh,2)}, v{44+i} offset:{hh*512}")
    a("v_and_b32 v48, 7, v2\nv_lshlrev_b32 v48, 8, v48\nv_lshl_or_b32 v48, v3, 4, v48")
    a(f"s_lshl_b32 s{sT1}, s{sX}, 1\ns_lshr_b32 s{sT0}, s{sP}, 3\ns_add_u32 s{sT1}, s{sT1}, s{sT0}")
    a(f"s_lshl_b32 s{sT0}, s{sT1}, 1\ns_lshr_b32 s{sT2}, s{sW}, 2\ns_add_u32 s{sT0}, s{sT0}, s{sT2}\ns_lshl_b32 s{sT0}, s{sT0}, 11\ns_and_b32 s{sT2}, s{sW}, 3\ns_lshl_b32 s{sT2}, s{sT2}, 6\ns_add_u32 s{sT0}, s{sT0}, s{sT2}\ns_add_u32 s{sT0}, s{sT0}, {H4B}")
    a(f"s_lshl_b32 s{sT1}, s{sT1}, 10\ns_and_b32 s{sT2}, s{sP}, 7\ns_lshl_b32 s{sT2}, s{sT2}, 7\ns_add_u32 s{sT1}, s{sT1}, s{sT2}\ns_add_u32 s{sT1}, s{sT1}, {H5}")
    a(f"s_lshl_b32 s{sT2}, s{sW}, 9\nv_lshlrev_b32 v49, 2, v2\nv_lshl_or_b32 v49, v3, 8, v49\nv_add_u32 v49, s{sT2}, v49")
    a("v_lshlrev_b32 v50, 4, v1\nv_lshlrev_b32 v51, 3, v2\nv_lshl_or_b32 v51, v3, 14, v51")
    a("s_waitcnt vmcnt(0) lgkmcnt(0)")
    a("S8L:")
    a(f"buffer_load_dwordx4 v[36:39], v48, {R('ws')}, s{sT0} offen sc1\ns_waitcnt vmcnt(0)")
    for i in range(4): mfma(208 + 4 * i, 36, 64 + 4 * i, "0")
    check([37, 39], 52, "S8L", "S8OK")
    a("S8OK:")
    stamp(9)
    for i in range(4): a(f"v_pk_add_f32 {vr(208+4*i,2)}, {vr(208+4*i,2)}, {vr(210+4*i,2)}")
    for i in range(4): a(f"v_add_f32 v{208+4*i}, v{208+4*i}, v{209+4*i}")
    a("s_mov_b32 exec_hi, 0")
    a(f"ds_write2_b32 v49, v208, v212 offset0:0 offset1:16\nds_write2_b32 v49, v216, v220 offset0:32 offset1:48")
    a("s_waitcnt lgkmcnt(0)\ns_barrier")
    a(f"s_cmp_lg_u32 s{sW}, 0\ns_cbranch_scc1 FIN")
    sum8(50, RED, 512, 64)
    a("v_cvt_pk_bf16_f32 v64, v64, v65\nv_cvt_pk_bf16_f32 v65, v66, v67")
    a(f"buffer_store_dwordx2 v[64:65], v51, {R('ws')}, s{sT1} offen sc1")
    a("s_branch FIN")

    a("LATE_B:")
    a(f"s_cmp_lt_u32 s{sP}, 8\ns_cbranch_scc1 MLP")
    silu_onehot(112, 128, 64)
    a(f"s_lshl_b32 s{sT2}, s{sX}, 1\ns_bfe_u32 s{sT3}, s{sP}, 0x10002\ns_add_u32 s{sT2}, s{sT2}, s{sT3}")
    a(f"s_lshr_b32 s{sT3}, s{sT2}, 2\ns_lshl_b32 s{sT3}, s{sT3}, 13\ns_and_b32 s{sT2}, s{sT2}, 3\ns_lshl_b32 s{sT2}, s{sT2}, 8\ns_add_u32 s{sT3}, s{sT3}, s{sT2}")
    a(f"s_and_b32 s{sT2}, s{sP}, 3\ns_lshl_b32 s{sT2}, s{sT2}, 10\ns_add_u32 s{sT3}, s{sT3}, s{sT2}\ns_add_u32 s{sT3}, s{sT3}, {HM}")
    a("v_and_b32 v49, 1, v3\nv_lshlrev_b32 v50, 4, v2\nv_lshl_or_b32 v50, v49, 3, v50\nv_lshrrev_b32 v49, 1, v3\nv_lshl_or_b32 v50, v49, 12, v50")
    mod_reduce(96, 128)
    a(f"s_cmp_lg_u32 s{sW}, 0\ns_cbranch_scc1 FIN")
    sum8(44, RED, 1024, 64)
    a("v_cvt_pk_bf16_f32 v64, v64, v65\nv_cvt_pk_bf16_f32 v65, v66, v67")
    a(f"buffer_store_dwordx2 v[64:65], v50, {R('ws')}, s{sT3} offen sc1")
    a("s_branch FIN")

    a("MLP:")
    a(f"s_cmp_eq_u32 s{sX}, 7\ns_cbranch_scc1 FIN")
    w1_dma(1)
    a(f"s_lshl_b32 s{sH}, s{sX}, 3\ns_add_u32 s{sH}, s{sH}, s{sP}")
    a(f"s_lshl_b32 s{sT0}, s{sH}, 15\ns_lshl_b32 s{sT1}, s{sW}, 7\ns_add_u32 s{sT0}, s{sT0}, s{sT1}")
    for g in range(4):
        a(f"s_add_u32 m0, s{sKVW}, {32768+g*1024}")
        if g: a(f"s_add_u32 s{sT0}, s{sT0}, 8192")
        a(f"buffer_load_dwordx4 v{54+(g&1)}, {R('w2')}, s{sT0} offen nt lds")
    a("v_and_b32 v49, 1, v3\nv_lshlrev_b32 v60, 4, v2\nv_lshl_or_b32 v60, v49, 3, v60\nv_lshrrev_b32 v49, 1, v3\nv_lshl_or_b32 v60, v49, 8, v60")
    a(f"v_and_b32 v49, 31, v1\nv_lshlrev_b32 v49, 1, v49\ns_lshl_b32 s{sT0}, s{sH}, 6\ns_and_b32 s{sB6}, s{sW}, 1\ns_lshl_b32 s{sT1}, s{sB6}, 10")
    a(f"s_bfe_u32 s{sCQ}, s{sH}, 0x10003\ns_lshl_b32 s{sT2}, s{sCQ}, 9")
    a(f"buffer_load_ushort v40, v49, {R('b1')}, s{sT0} offen")
    a(f"buffer_load_dwordx2 v[36:37], v60, {R('x')}, s{sT1} offen\nbuffer_load_dwordx2 v[38:39], v60, {R('x')}, s{sT1} offen offset:512")
    a(f"buffer_load_dwordx2 v[42:43], v60, {R('b2')}, s{sT2} offen")
    a("v_lshrrev_b32 v50, 2, v2\nv_lshl_add_u32 v50, v3, 3, v50\nv_and_b32 v48, 3, v2\nv_lshlrev_b32 v48, 3, v48\nv_and_b32 v49, 1, v3\nv_lshl_or_b32 v48, v49, 5, v48")
    a(f"v_lshl_or_b32 v48, v50, 6, v48\nv_add_u32 v48, s{sKVW}, v48\nv_xor_b32 v49, 32, v48")
    a(f"v_and_b32 v41, 1, v2\nv_lshlrev_b32 v50, 10, v41\nv_lshl_or_b32 v50, v3, 4, v50\ns_lshl_b32 s{sT0}, s{sW}, 7\nv_add_u32 v50, s{sT0}, v50")
    a(f"v_bfe_u32 v51, v2, 1, 1\nv_lshlrev_b32 v51, 6, v51\nv_lshl_or_b32 v51, v41, 7, v51\nv_lshl_or_b32 v51, v3, 4, v51\ns_lshl_b32 s{sT1}, s{sW}, 8\nv_add_u32 v51, s{sT1}, v51")
    a(f"v_lshlrev_b32 v52, 2, v1\nv_lshl_add_u32 v53, v1, 1, s{sT0}\nv_lshlrev_b32 v57, 6, v41\nv_lshl_or_b32 v57, v3, 4, v57\nv_add_u32 v57, s{sT0}, v57")
    a("v_mul_u32_u24 v58, 57344, v41\nv_lshrrev_b32 v41, 1, v2\nv_lshl_add_u32 v58, v41, 5, v58\nv_lshl_add_u32 v58, v3, 3, v58")
    a("v_lshlrev_b32 v59, 4, v2\nv_lshl_or_b32 v59, v3, 10, v59")
    for i in range(32): a(f"v_mov_b32 v{192+i}, 0")
    a("v_cmp_gt_u32 vcc, 8, v2")
    for r in range(4): a(f"v_and_b32 v{224+r}, 0x3f803f80, v{32+r}")
    for r in range(4): a(f"v_cndmask_b32 v{228+r}, 0, v{224+r}, vcc\nv_xor_b32 v{232+r}, v{228+r}, v{224+r}")
    a("s_waitcnt vmcnt(0)")
    for tau in range(2):
        for ft in range(2):
            for hh in range(2): a(f"ds_read_b64_tr_b16 {vr(64+8*tau+4*ft+2*hh,2)}, v{48+ft} offset:{tau*2048+hh*256}")
    for i in range(4):
        for hh in range(2): a(f"ds_read_b64_tr_b16 {vr(80+4*i+2*hh,2)}, v{44+i} offset:{32768+hh*512}")
    a(f"s_cmp_ge_u32 s{sW}, 2\ns_cbranch_scc1 MLP_Y")
    a(f"s_lshl_b32 s{sT1}, s{sW}, 12\ns_add_u32 s{sT1}, s{sT1}, {HM}")
    a("HML:")
    for k in range(4):
        a(f"s_add_u32 s{sT0}, s{sT1}, {k*8192}")
        for be in range(4): a(f"buffer_load_dwordx4 {vr(128+16*k+4*be,4)}, v59, {R('ws')}, s{sT0} offen offset:{be*256} sc1")
    a("s_waitcnt vmcnt(0)")
    check([129 + 2 * i for i in range(32)], 41, "HML", "HMOK")
    a("HMOK:")
    for k in range(4):
        for be in range(4): mfma(96 + 8 * k + 4 * (be >> 1), 228 + 4 * (be & 1), 128 + 16 * k + 4 * be, "0" if (be & 1) == 0 else None)
    a(f"s_lshl_b32 s{sT1}, s{sW}, 14\ns_add_u32 s{sT1}, s{sT1}, {H5}")
    for i in range(4): a(f"v_lshlrev_b32 v{240+2*i}, 16, v{36+i}\nv_and_b32 v{241+2*i}, 0xffff0000, v{36+i}")
    for i in range(8): a(f"v_add_f32 v{112+i}, 1.0, v{112+i}")
    a("H5L:")
    for i in range(4):
        a(f"s_add_u32 s{sT0}, s{sT1}, {i*4096}")
        for be in range(4): a(f"buffer_load_dwordx4 {vr(128+16*i+4*be,4)}, v59, {R('ws')}, s{sT0} offen offset:{be*256} sc1")
    for i in range(4):
        for be in range(4):
            k = 4 * i + be
            a(f"s_waitcnt vmcnt({15-k})")
            mfma(248 + 4 * (be >> 1), 228 + 4 * (be & 1), 128 + 4 * k, "0" if (i == 0 and (be & 1) == 0) else None)
            a(f"v_max3_u32 v41, v{41 if k else 129}, v{129+4*k}, v{131+4*k}")
    check([41], 41, "H5L", "H5OK")
    a("H5OK:")
    stamp(9)
    for i in range(8): a(f"v_fmac_f32 v{240+i}, v{96+i}, v{248+i}")
    def ln(src, dst):
        a(f"v_pk_add_f32 v[36:37], {vr(src,2)}, {vr(src+2,2)}\nv_pk_mul_f32 v[38:39], {vr(src,2)}, {vr(src,2)}")
        for i in range(1, 4):
            if i > 1: a(f"v_pk_add_f32 v[36:37], v[36:37], {vr(src+2*i,2)}")
            a(f"v_pk_fma_f32 v[38:39], {vr(src+2*i,2)}, {vr(src+2*i,2)}, v[38:39]")
        a("v_add_f32 v36, v36, v37\nv_add_f32 v38, v38, v39")
        red_dpp("v_add_f32", [36, 38], R16)
        red_s("v_add_f32", [36, 38], [37, 39])
        a(f"v_mul_f32 v36, {hex(f2u(1/512))}, v36\nv_mov_b32 v37, {hex(f2u(1e-5))}\nv_fmac_f32 v37, {hex(f2u(1/512))}, v38")
        a("v_fma_f32 v37, -v36, v36, v37\nv_rsq_f32 v37, v37")
        for i in range(8): a(f"v_sub_f32 v{dst+i}, v{src+i}, v36")
        for i in range(8): a(f"v_mul_f32 v{dst+i}, v{dst+i}, v37")
    ln(240, 128)
    for i in range(8): a(f"v_fma_f32 v{128+i}, v{128+i}, v{112+i}, v{104+i}")
    ln(128, 128)
    for i in range(4): a(f"v_cvt_pk_bf16_f32 v{128+i}, v{128+2*i}, v{129+2*i}")
    a(f"s_lshl_b32 s{sT0}, s{sW}, 10\nv_add_u32 v41, s{sT0}, v60")
    a(f"ds_write_b64 v41, v[128:129] offset:{YL}\nds_write_b64 v41, v[130:131] offset:{YL+512}")
    a("MLP_Y:")
    a("s_waitcnt lgkmcnt(0)\ns_barrier")
    for ft in range(2):
        m = hex(0x00030003 << (2 * ft)); exec_set(m, m)
        for tau in range(2): a(f"ds_read_b128 {vr(192+8*tau+4*ft,4)}, v50 offset:{YL+tau*64}")
    exec_all()
    a(f"s_lshl_b32 s{sT0}, s{sH}, 10\ns_lshl_b32 s{sT1}, s{sW}, 7\ns_add_u32 s{sT0}, s{sT0}, s{sT1}\ns_add_u32 s{sT0}, s{sT0}, {H7}")
    a("v_lshlrev_b32 v40, 16, v40")
    k = 0
    for ft in range(2):
        for tau in range(2):
            a(f"s_waitcnt lgkmcnt({3-k})")
            mfma(136, 64 + 8 * tau + 4 * ft, 192 + 8 * tau + 4 * ft, "0" if k == 0 else None); k += 1
    exec_set("0x000f000f", "0x000f000f")
    a(f"ds_write_b128 v51, v[136:139] offset:{RED}")
    exec_all()
    a("s_waitcnt lgkmcnt(0)\ns_barrier")
    for k in range(4): a(f"ds_read2st64_b32 {vr(136+2*k,2)}, v52 offset0:{2*k} offset1:{2*k+1}")
    a("s_waitcnt lgkmcnt(2)\nv_pk_add_f32 v[136:137], v[136:137], v[138:139]\ns_waitcnt lgkmcnt(0)\nv_pk_add_f32 v[140:141], v[140:141], v[142:143]")
    a("v_add_f32 v136, v136, v40\nv_pk_add_f32 v[136:137], v[136:137], v[140:141]\nv_add_f32 v136, v136, v137")
    G0 = -2 * 0.7978845608028654 * LOG2E
    a(f"v_mul_f32 v137, v136, v136\nv_mov_b32 v138, {hex(f2u(G0))}\nv_fmac_f32 v138, {hex(f2u(G0*0.044715))}, v137\nv_mul_f32 v137, v136, v138")
    a("v_exp_f32 v137, v137\nv_add_f32 v137, 1.0, v137\nv_rcp_f32 v137, v137\nv_mul_f32 v136, v136, v137\nv_cvt_pk_bf16_f32 v136, v136, v136")
    a(f"ds_write_b16 v53, v136 offset:{HID}")
    for i in range(4):
        m = hex(0x00030003 << (2 * i)); exec_set(m, m)
        a(f"ds_read_b128 {vr(208+4*i,4)}, v57 offset:{HID}")
    exec_all()
    for i in range(4):
        a(f"s_waitcnt lgkmcnt({3-i})")
        mfma(136, 80 + 4 * i, 208 + 4 * i, "0" if i == 0 else None)
    a("v_cvt_pk_bf16_f32 v136, v136, v137\nv_cvt_pk_bf16_f32 v137, v138, v139")
    exec_set("0x00ff00ff", "0x00ff00ff")
    a(f"buffer_store_dwordx2 v[136:137], v58, {R('ws')}, s{sT0} offen sc1")
    exec_all()
    a("v_lshrrev_b32 v48, 3, v1\nv_and_b32 v49, 7, v1\nv_lshlrev_b32 v49, 4, v49\nv_lshl_or_b32 v48, v48, 10, v49")
    a(f"s_cmp_ge_u32 s{sH}, 16\ns_cbranch_scc1 FIN\ns_and_b32 s{sT0}, s{sH}, 1\ns_cmp_lg_u32 s{sT0}, s{sW}\ns_cbranch_scc1 FIN")
    a(f"s_cmp_eq_u32 s{sCQ}, 0\ns_cbranch_scc1 F_D0")
    for i in range(4): a(f"v_mov_b32 v{240+i}, v{244+i}\nv_mov_b32 v{120+i}, v{124+i}")
    a("F_D0:")
    a("v_lshlrev_b32 v244, 16, v42\nv_and_b32 v245, 0xffff0000, v42\nv_lshlrev_b32 v246, 16, v43\nv_and_b32 v247, 0xffff0000, v43")
    for i in range(4): a(f"v_fmac_f32 v{240+i}, v{120+i}, v{244+i}")
    a(f"s_mul_i32 s{sT1}, s{sW}, 57344\ns_lshr_b32 s{sT0}, s{sH}, 1\ns_lshl_b32 s{sT2}, s{sT0}, 7\ns_add_u32 s{sT1}, s{sT1}, s{sT2}\ns_add_u32 s{sT1}, s{sT1}, {H7}")
    a(f"s_and_b32 s{sT2}, s{sT0}, 1\ns_lshl_b32 s{sT2}, s{sT2}, 3\ns_lshl_b32 s{sT2}, 0x00ff00ff, s{sT2}\ns_bitcmp1_b32 s{sT0}, 1\ns_cselect_b32 s{sE0}, 0, s{sT2}\ns_cselect_b32 s{sE0+1}, s{sT2}, 0")
    a(f"s_lshl_b32 s{sT2}, s{sW}, 10\ns_lshl_b32 s{sT3}, s{sCQ}, 9\ns_add_u32 s{sT2}, s{sT2}, s{sT3}")
    a("s_waitcnt vmcnt(0)")
    a("H7L:")
    for i in range(7):
        a(f"s_add_u32 s{sT0}, s{sT1}, {i*8192}")
        a(f"buffer_load_dwordx4 {vr(128+4*i,4)}, v48, {R('ws')}, s{sT0} offen sc1")
    for i in range(7):
        a(f"s_waitcnt vmcnt({6-i})")
        mfma(248, 224, 128 + 4 * i, "0" if i == 0 else None)
        a(f"v_max3_u32 v41, v{41 if i else 129}, v{129+4*i}, v{131+4*i}")
    check([41], 41, "H7L", "H7OK")
    a("H7OK:")
    red_dpp("v_add_f32", [248, 249, 250, 251], ["row_ror:8"])
    for i in range(4): a(f"v_fmac_f32 v{240+i}, v{120+i}, v{248+i}")
    a("v_cvt_pk_bf16_f32 v240, v240, v241\nv_cvt_pk_bf16_f32 v241, v242, v243")
    a(f"s_mov_b64 exec, s[{sE0}:{sE0+1}]")
    a(f"buffer_store_dwordx2 v[240:241], v60, {R('out')}, s{sT2} offen")
    a("FIN:")
    if stamps:
        exec_all()
        a("s_waitcnt vmcnt(0)\ns_memrealtime s[100:101]\ns_waitcnt lgkmcnt(0)")
        for k in range(11): a(f"v_writelane_b32 v36, s{80+2*k}, {k}")
        a(f"v_writelane_b32 v36, s{sIT}, 11")
        a(f"s_lshl_b32 s{sT0}, s2, 3\ns_add_u32 s{sT0}, s{sT0}, s{sW}\ns_lshl_b32 s{sT0}, s{sT0}, 6\ns_add_u32 s{sT0}, s{sT0}, {STAMP}")
        a("v_lshlrev_b32 v37, 2, v1\ns_mov_b64 exec, 0xffff")
        a(f"buffer_store_dword v36, v37, {R('ws')}, s{sT0} offen")
    a("s_waitcnt vmcnt(0)")
    a("END:\ns_endpgm")
    lines, pads = hazard.fix(a.lines)
    return wrap("\n".join(lines) + "\n", 256, 512, 160 * 1024)

if __name__ == "__main__":
    import sys
    open(sys.argv[1] if len(sys.argv) > 1 else "k.s", "w").write(gen())
```

```python
from asmlib import *
import hazard, struct

def f2u(x): return struct.unpack("<I", struct.pack("<f", x))[0]
LOG2E = 1.4426950408889634
H1, H3, H4B, H5, HM, H7, ML, H4 = 0, 0x10000, 0x20000, 0x30000, 0x38000, 0x40000, 0x60000, 0x100000
STAMP = 0x800000
QL, PB, MX, MLW, YL, HID, RED, KV = 0, 16384, 20480, 20992, 21504, 23552, 0, 32768
B2L, B3L = KV + 32768, KV + 65536
PA, MXA, NCLR = KV, KV + 8192, 48
SRD = dict(ws=4, ckv=8, wq=12, wuk=16, wuv=20, wo=24, w1=28, w2=32, wmod=36, x=40, c=44, b1=48, b2=52, out=56, dbg=60)
def R(n): return f"s[{SRD[n]}:{SRD[n]+3}]"
def vr(a, n): return f"v[{a}:{a+n-1}]" if n > 1 else f"v{a}"
sW, sX, sB, sP = 3, 64, 65, 66
sT0, sT1, sT2, sT3, sIT = 67, 68, 69, 70, 71
sCK, sKVW, sE0 = 72, 73, 74
sH, sCQ, sB6 = 76, 77, 78
sSZW = 79
SPIN = 1 << 16
FULL = "row_mask:0xf bank_mask:0xf"

def gen(NPRE=4, stamps=False, NT='', NPS1=0, CLRPOS=2, W2E=False, FULLST=True, FL3=True, FL4=True, ORD=1, THR=0, MB=2, PROBE=None, PWG=None):
    a = Asm()
    global LAST_ORD; LAST_ORD = ORD
    if NPS1 is None: NPS1 = NPRE
    def nt(n): return ' nt' if n in NT.split() else ''
    def stamp(k):
        if PROBE and (k == PROBE or k == "start"): a("s_memrealtime s[82:83]")
        if stamps and k in stamps:
            i = stamps.index(k); a(f"s_memrealtime s[{80+2*i}:{81+2*i}]")
    def exec_set(lo, hi): a(f"s_mov_b32 exec_lo, {lo}\ns_mov_b32 exec_hi, {hi}")
    def exec_all(): a("s_mov_b64 exec, -1")
    def mfma(d, A, B, c=None): a(f"v_mfma_f32_16x16x32_bf16 {vr(d,4)}, {vr(A,4)}, {vr(B,4)}, {vr(d,4) if c is None else c}")
    def red_s(op, regs, tmps):
        for sw in ("v_permlane32_swap_b32", "v_permlane16_swap_b32"):
            for r, t in zip(regs, tmps): a(f"v_mov_b32 v{t}, v{r}")
            for r, t in zip(regs, tmps): a(f"{sw} v{r}, v{t}")
            for r, t in zip(regs, tmps): a(f"{op} v{r}, v{r}, v{t}")
    def red_dpp(op, regs, steps):
        for st in steps:
            for r in regs: a(f"{op}_dpp v{r}, v{r}, v{r} {st} {FULL}")
    R8 = ["quad_perm:[1,0,3,2]", "quad_perm:[2,3,0,1]", "row_half_mirror"]
    R16 = ["row_ror:8", "row_ror:4", "row_ror:2", "row_ror:1"]
    def check(dw, tmp, loop, out):
        dw = list(dw)
        if len(dw) == 1: cur = dw.pop()
        else:
            cur = None
            while dw:
                if cur is None:
                    if len(dw) >= 3: a(f"v_max3_u32 v{tmp}, v{dw[0]}, v{dw[1]}, v{dw[2]}"); dw = dw[3:]
                    else: a(f"v_max_u32 v{tmp}, v{dw[0]}, v{dw[1]}"); dw = dw[2:]
                    cur = tmp
                elif len(dw) >= 2: a(f"v_max3_u32 v{tmp}, v{tmp}, v{dw[0]}, v{dw[1]}"); dw = dw[2:]
                else: a(f"v_max_u32 v{tmp}, v{tmp}, v{dw[0]}"); dw = dw[1:]
        a(f"v_cmp_eq_u32 vcc, -1, v{cur}")
        a(f"s_cbranch_vccz {out}")
        a(f"s_add_u32 s{sIT}, s{sIT}, 1\ns_cmp_lt_u32 s{sIT}, {SPIN}\ns_cbranch_scc1 {loop}")
    def ckv_dma(k):
        q, g = k >> 2, k & 3
        a(f"s_add_u32 m0, s{sKVW}, {q*3840+g*1024}")
        a(f"buffer_load_dwordx4 v{12+g}, {R('ckv')}, s{sCK} offen offset:{q*256}{nt('ckv')} lds")

    def late_common():
        a("v_and_b32 v37, 9, v2\nv_and_b32 v38, 2, v2\nv_lshl_or_b32 v37, v38, 1, v37\nv_bfe_u32 v38, v2, 2, 1\nv_lshl_or_b32 v37, v38, 1, v37")
        a("v_xor_b32 v38, v37, v3\nv_lshlrev_b32 v38, 4, v38\nv_lshl_or_b32 v4, v2, 8, v38")
        for t in range(1, 4): a(f"v_xor_b32 v{4+t}, {t<<6}, v4")
        for t in range(4): a(f"v_add_u32 v{8+t}, s{sKVW}, v{4+t}")
        a(f"s_lshl_b32 s{sT0}, s{sW}, 1\nv_lshrrev_b32 v38, 1, v3\nv_or_b32 v38, s{sT0}, v38\nv_xor_b32 v38, v38, v37")
        a("v_lshlrev_b32 v38, 4, v38\nv_lshl_or_b32 v38, v2, 8, v38\nv_and_b32 v39, 1, v3\nv_lshl_or_b32 v61, v39, 3, v38")
        masks()
    def masks():
        a("v_and_b32 v38, 1, v2\nv_lshlrev_b32 v38, 4, v38\nv_mov_b32 v39, 0xffff\nv_lshlrev_b32 v39, v38, v39\nv_bfe_u32 v38, v2, 1, 2")
        for r in range(4):
            a(f"v_cmp_eq_u32 vcc, {r}, v38\nv_cndmask_b32 v{32+r}, 0, v39, vcc")
    def c_addr(dst):
        a(f"v_lshrrev_b32 v{dst}, 3, v2\nv_lshlrev_b32 v{dst}, 10, v{dst}\nv_lshl_or_b32 v{dst}, v3, 3, v{dst}")
    def silu_onehot(cr, A, t):
        a(f"v_lshlrev_b32 v{t}, 16, v{cr}\nv_and_b32 v{t+1}, 0xffff0000, v{cr}\nv_lshlrev_b32 v{t+2}, 16, v{cr+1}\nv_and_b32 v{t+3}, 0xffff0000, v{cr+1}")
        for i in range(4): a(f"v_mul_f32 v{t+4+i}, {hex(f2u(-LOG2E))}, v{t+i}")
        for i in range(4): a(f"v_exp_f32 v{t+4+i}, v{t+4+i}")
        for i in range(4): a(f"v_add_f32 v{t+4+i}, 1.0, v{t+4+i}")
        for i in range(4): a(f"v_rcp_f32 v{t+4+i}, v{t+4+i}")
        for i in range(4): a(f"v_mul_f32 v{t+i}, v{t+i}, v{t+4+i}")
        for i in range(4): a(f"v_cvt_pk_bf16_f32 v{t+i}, v{t+i}, v{t+i}")
        for i in range(4):
            for r in range(4): a(f"v_and_b32 v{A+4*i+r}, v{t+i}, v{32+r}")
    def mod_reduce(W, A):
        for i in range(4): mfma(208, A + 4 * i, W + 4 * i, "0" if i == 0 else None)
        a(f"s_lshl_b32 s{sT0}, s{sW}, 10\nv_lshlrev_b32 v44, 4, v1\nv_add_u32 v45, s{sT0}, v44")
        a(f"ds_write_b128 v45, v[208:211] offset:{RED}\ns_waitcnt lgkmcnt(0)\ns_barrier")
    def sum8(addr, base, stride, buf, n=8):
        for k in range(n): a(f"ds_read_b128 {vr(buf+4*k,4)}, v{addr} offset:{base+k*stride}")
        for k in range(0, n, 2):
            a(f"s_waitcnt lgkmcnt({n-2-k})")
            for hlf in (0, 2): a(f"v_pk_add_f32 {vr(buf+4*k+hlf,2)}, {vr(buf+4*k+hlf,2)}, {vr(buf+4*k+4+hlf,2)}")
            if k:
                for hlf in (0, 2): a(f"v_pk_add_f32 {vr(buf+hlf,2)}, {vr(buf+hlf,2)}, {vr(buf+4*k+hlf,2)}")

    def w1_dma(half):
        a(f"s_and_b32 s{sT1}, s{sP}, 1")
        if half: a(f"s_xor_b32 s{sT1}, s{sT1}, 1")
        a(f"s_lshl_b32 s{sT0}, s{sW}, 1\ns_add_u32 s{sT0}, s{sT0}, s{sT1}\ns_mul_i32 s{sT0}, s{sT0}, {32*3584}")
        a(f"s_lshl_b32 s{sT2}, s{sX}, 3\ns_add_u32 s{sT2}, s{sT2}, s{sP}\ns_lshl_b32 s{sT2}, s{sT2}, 6\ns_add_u32 s{sT0}, s{sT0}, s{sT2}")
        a(f"s_lshl_b32 s{sT1}, s{sT1}, 11\ns_add_u32 m0, s{sKVW}, s{sT1}")
        a(f"buffer_load_dwordx4 v56, {R('w1')}, s{sT0} offen{nt('w1')} lds")
        a(f"s_add_u32 m0, m0, 1024\ns_add_u32 s{sT0}, s{sT0}, {16*3584}")
        a(f"buffer_load_dwordx4 v56, {R('w1')}, s{sT0} offen{nt('w1')} lds")
    def srd(*ns):
        for n in ns: a(f"s_mov_b32 s{SRD[n]+2}, {SIZES[n]}\ns_mov_b32 s{SRD[n]+3}, 0x00020000")
    def cnt_load():
        a(f"s_cmp_eq_u32 s{sW}, 7\ns_cselect_b64 exec, 3, 0\nbuffer_load_dword v63, v62, {R('dbg')}, 0 offen sc1")
        exec_all()
    def cnt_check(both, tag):
        a(f"s_cmp_lg_u32 s{sW}, 7\ns_cbranch_scc1 {tag}_OK\n{tag}_CK:")
        a(f"v_readlane_b32 s{sE0}, v63, 1")
        if both: a(f"v_readlane_b32 s{sE0+1}, v63, 0\ns_add_u32 s{sE0+1}, s{sE0+1}, {NCLR-32}\ns_min_u32 s{sE0}, s{sE0}, s{sE0+1}")
        a(f"s_cmp_ge_u32 s{sE0}, {NCLR}\ns_cbranch_scc1 {tag}_OK")
        cnt_load()
        a(f"s_add_u32 s{sIT}, s{sIT}, 1\ns_cmp_lt_u32 s{sIT}, {SPIN}\ns_waitcnt vmcnt(0)\ns_cbranch_scc1 {tag}_CK")
        a(f"{tag}_OK:")
    def pub_line(r, sh, tag):
        a(f"ds_write_b64 v252, {vr(r,2)} offset:{MX}")
        exec_all()
        a(f"v_lshlrev_b32 v254, {sh}, v3\nv_lshl_or_b32 v254, v2, 4, v254")
        a(f"s_cmp_lg_u32 s{sW}, 0\ns_waitcnt lgkmcnt(0)\ns_barrier\ns_cbranch_scc1 {tag}_E")
        a(f"s_mov_b32 exec_hi, 0\nds_read_b128 {vr(r,4)}, v253 offset:{MX}\ns_waitcnt lgkmcnt(0)")
        a(f"buffer_store_dwordx4 {vr(r,4)}, v254, {R('ws')}, s{sT0} offen sc1\n{tag}_E:")
    a("s_cmp_ge_u32 s2, 256\ns_cbranch_scc1 END")
    if stamps:
        for i in range(1, 10): a(f"s_mov_b32 s{80+2*i}, 0")
    stamp("start")
    for n in ["wmod", "wq", "ckv", "ws", "c", "wuk", "x", "dbg", "wuv", "wo", "w1", "w2", "b1", "b2", "out"]:
        a(f"s_load_dwordx2 s[{SRD[n]}:{SRD[n]+1}], s[0:1], {KOFF[n]}")
    a("v_lshrrev_b32 v3, 6, v0\nv_and_b32 v1, 63, v0\nv_and_b32 v2, 15, v0")
    a(f"v_readfirstlane_b32 s{sW}, v3")
    a("v_lshrrev_b32 v3, 4, v1")
    a(f"s_and_b32 s{sX}, s2, 7\ns_lshr_b32 s{sP}, s2, 4\ns_mov_b32 s{sIT}, 0")
    srd("ws", "dbg")
    a("v_and_b32 v36, 2, v3\nv_add_u32 v36, v36, v3\nv_xor_b32 v36, v36, v2\nv_lshlrev_b32 v36, 4, v36")
    a("v_mov_b32 v40, -1\nv_mov_b32 v41, -1\nv_mov_b32 v42, -1\nv_mov_b32 v43, -1\nv_lshlrev_b32 v62, 7, v1")
    a(f"s_lshl_b32 s{sT1}, s{sW}, 14\ns_add_u32 s{sKVW}, s{sT1}, {KV}")
    if ORD == 0: a("s_bitcmp1_b32 s2, 3\ns_cbranch_scc1 BPATH")
    else:
        a(f"s_lshr_b32 s{sT0}, s2, 3\ns_sub_u32 s{sP}, s{sT0}, {ORD*4}\ns_cmp_lt_u32 s{sP}, 16\ns_cbranch_scc1 BPATH\ns_and_b32 s{sP}, s{sT0}, 15")
    srd("ckv")
    a(f"s_lshl_b32 s{sT0}, s{sX}, 4\ns_add_u32 s{sB}, s{sT0}, s{sP}\ns_lshl_b32 s{sCK}, s{sB}, 17\ns_add_u32 s{sCK}, s{sCK}, s{sT1}")
    a("v_lshl_add_u32 v12, v3, 10, v36")
    for g in range(1, 4):
        a(f"v_xor_b32 v{12+g}, {((g&1)*32)|((g>>1)*128)|(g*4096)}, v12")
    stamp("prol")
    a(f"s_cmp_ge_u32 s{sP}, 4\ns_cbranch_scc1 A_NOS1")
    srd("c", "wmod", "x")
    c_addr(46)
    a("v_and_b32 v47, 7, v2\nv_lshlrev_b32 v47, 4, v47\nv_lshrrev_b32 v48, 3, v2\nv_lshl_or_b32 v48, v48, 10, v47")
    a("v_mul_u32_u24 v49, 24576, v3\nv_add_u32 v48, v48, v49")
    a("v_and_b32 v49, 1, v3\nv_lshl_or_b32 v47, v49, 3, v47\nv_lshrrev_b32 v49, 1, v3")
    a("v_lshl_or_b32 v50, v49, 12, v47\nv_lshl_or_b32 v51, v49, 10, v47\nv_lshlrev_b32 v52, 5, v1")
    a(f"s_lshl_b32 s{sT0}, s{sP}, 3\ns_add_u32 s{sT0}, s{sT0}, s{sW}\ns_lshl_b32 s{sT1}, s{sT0}, 5")
    a(f"s_mul_i32 s{sT0}, s{sT0}, {16*6144}\ns_lshl_b32 s{sT2}, s{sX}, 7\ns_add_u32 s{sT0}, s{sT0}, s{sT2}")
    a(f"s_lshl_b32 s{sT3}, s{sP}, 10\ns_add_u32 s{sT3}, s{sT3}, s{sT2}")
    a(f"s_cmp_eq_u32 s{sW}, 1\ns_cselect_b32 exec_lo, 0x00ff00ff, 0\ns_cselect_b32 exec_hi, 0x00ff00ff, 0")
    a("s_waitcnt lgkmcnt(0)")
    a(f"buffer_store_dwordx2 v[40:41], v50, {R('ws')}, s{sT3} offen sc1")
    exec_all()
    a(f"buffer_load_dwordx2 v[36:37], v46, {R('c')}, s{sT1} offen")
    for i in range(4):
        a(f"buffer_load_dwordx4 {vr(64+4*i,4)}, v48, {R('wmod')}, s{sT0} offen nt")
        if i < 3: a(f"s_add_u32 s{sT0}, s{sT0}, 6144")
    a(f"s_cmp_eq_u32 s{sW}, 0\ns_cselect_b64 exec, -1, 0")
    a(f"buffer_load_dwordx4 v[80:83], v52, {R('x')}, 0 offen\nbuffer_load_dwordx4 v[84:87], v52, {R('x')}, 0 offen offset:16")
    a(f"buffer_load_dwordx2 v[88:89], v51, {R('x')}, s{sT2} offen")
    exec_all()
    for k in range(NPS1): ckv_dma(k)
    masks()
    stamp("s1iss")
    a(f"s_waitcnt vmcnt({7+NPS1})")
    stamp("s1c")
    a(f"s_cmp_eq_u32 s{sW}, 1\ns_cselect_b64 exec, 1, 0\nv_mov_b32 v53, 1\nv_mov_b32 v54, 0")
    exec_all()
    a("v_mov_b32 v53, 1\nv_mov_b32 v54, 0")
    a(f"s_cselect_b64 exec, 1, 0")
    a(f"buffer_atomic_add v53, v54, {R('dbg')}, 0 offen sc1")
    exec_all()
    silu_onehot(36, 128, 96)
    a(f"s_waitcnt vmcnt({1+NPS1})")
    stamp("s1w")
    a(f"s_cmp_lg_u32 s{sW}, 0\ns_cbranch_scc1 S1_NOLN")
    for i in range(8):
        a(f"v_lshlrev_b32 v{96+2*i}, 16, v{80+i}\nv_and_b32 v{97+2*i}, 0xffff0000, v{80+i}")
    a("v_pk_add_f32 v[112:113], v[96:97], v[98:99]")
    for i in range(2, 8): a(f"v_pk_add_f32 v[112:113], v[112:113], {vr(96+2*i,2)}")
    a("v_add_f32 v112, v112, v113")
    def red32(r, t):
        red_dpp("v_add_f32", [r], R16)
        a(f"v_mov_b32 v{t}, v{r}\nv_permlane16_swap_b32 v{r}, v{t}\nv_add_f32 v{r}, v{r}, v{t}")
    red32(112, 113)
    a(f"v_mul_f32 v112, {hex(f2u(1/512))}, v112")
    for i in range(16): a(f"v_sub_f32 v{96+i}, v{96+i}, v112")
    a("v_mul_f32 v114, v96, v96")
    for i in range(1, 16): a(f"v_fmac_f32 v114, v{96+i}, v{96+i}")
    red32(114, 113)
    a(f"v_mov_b32 v113, {hex(f2u(1e-5))}\nv_fmac_f32 v113, {hex(f2u(1/512))}, v114\nv_rsq_f32 v113, v113")
    a("v_lshlrev_b32 v116, 16, v88\nv_and_b32 v117, 0xffff0000, v88\nv_lshlrev_b32 v118, 16, v89\nv_and_b32 v119, 0xffff0000, v89")
    for i in range(4): a(f"v_sub_f32 v{116+i}, v{116+i}, v112\nv_mul_f32 v{116+i}, v{116+i}, v113")
    a(f"s_cmp_eq_u32 s{sP}, 0\ns_cselect_b32 s{sT0}, 1.0, 0\nv_mov_b32 v120, s{sT0}")
    a("S1_NOLN:")
    mod_reduce(64, 128)
    stamp("s1bar")
    a(f"s_cmp_lg_u32 s{sW}, 0\ns_cbranch_scc1 S1_DONE")
    sum8(44, RED, 1024, 64)
    for i in range(4): a(f"v_add_f32_dpp v{68+i}, v{64+i}, v120 row_ror:8 {FULL}")
    for i in range(4): a(f"v_fmac_f32 v{64+i}, v{68+i}, v{116+i}")
    a("v_cvt_pk_bf16_f32 v64, v64, v65\nv_cvt_pk_bf16_f32 v65, v66, v67")
    exec_set("0x00ff00ff", "0x00ff00ff")
    a(f"buffer_store_dwordx2 v[64:65], v50, {R('ws')}, s{sT3} offen sc1")
    exec_all()
    a("S1_DONE:")
    stamp("s1pub")
    a("s_barrier")
    for k in range(NPS1, NPRE): ckv_dma(k)
    a("s_branch A2")
    a("A_NOS1:")
    a(f"s_cmp_ge_u32 s{sP}, 10\ns_cbranch_scc1 A_PLAIN")
    a(f"s_lshl_b32 s{sT0}, s{sP}, 3\ns_add_u32 s{sT0}, s{sT0}, s{sX}\ns_lshl_b32 s{sT0}, s{sT0}, 13\ns_add_u32 s{sT0}, s{sT0}, {H3-32*8192 & 0xffffffff}")
    a("v_lshlrev_b32 v44, 4, v0\nv_mov_b32 v53, 1\nv_mov_b32 v54, 128\ns_waitcnt lgkmcnt(0)")
    a(f"buffer_store_dwordx4 v[40:43], v44, {R('ws')}, s{sT0} offen sc1")
    for k in range(NPRE): ckv_dma(k)
    a(f"s_waitcnt vmcnt({NPRE})\ns_barrier")
    a(f"s_cmp_eq_u32 s{sW}, 0\ns_cselect_b64 exec, 1, 0")
    a(f"buffer_atomic_add v53, v54, {R('dbg')}, 0 offen sc1")
    exec_all()
    a("s_branch A2")
    a("A_PLAIN:")
    a("s_waitcnt lgkmcnt(0)")
    for k in range(NPRE): ckv_dma(k)
    a("A2:")
    for k in range(NPRE, 16):
        if k < THR: a(f"s_waitcnt vmcnt({NPRE-1})")
        ckv_dma(k)
    cnt_load()
    stamp("aiss")
    late_common()
    srd("w1", "w2", "b1", "b2", "x", "out")
    a("v_lshrrev_b32 v47, 2, v2\nv_and_b32 v48, 3, v2\nv_and_b32 v49, 1, v3")
    a("v_and_b32 v50, 2, v47\nv_add_u32 v50, v50, v47\nv_xor_b32 v50, v50, v48")
    a(f"s_and_b32 s{sT1}, s{sW}, 1\nv_xor_b32 v51, s{sT1}, v49\nv_lshl_or_b32 v50, v51, 3, v50\nv_lshlrev_b32 v50, 4, v50")
    a("v_and_b32 v51, 1, v48\nv_lshl_or_b32 v50, v51, 3, v50")
    a("v_lshl_or_b32 v51, v49, 3, v47\nv_lshl_or_b32 v50, v51, 8, v50\nv_lshrrev_b32 v51, 1, v3\nv_lshl_or_b32 v50, v51, 14, v50")
    a(f"s_lshr_b32 s{sT1}, s{sW}, 1\ns_lshl_b32 s{sT1}, s{sT1}, 12\ns_add_u32 s{sT1}, s{sT1}, {KV}\nv_add_u32 v16, s{sT1}, v50")
    for i in range(4):
        for hh in range(2):
            if i or hh: a(f"v_xor_b32 v{16+2*i+hh}, {(hh*(1024|32))|((i>>1)*64)|((i&1)*8)}, v16")
    for k in range(8): a(f"v_add_u32 v{24+k}, 0x10000, v{16+k}")
    a("v_lshrrev_b32 v46, 3, v1\nv_and_b32 v47, 2, v46\nv_and_b32 v54, 7, v1\nv_xor_b32 v54, v54, v47\nv_lshlrev_b32 v54, 4, v54\nv_lshl_or_b32 v54, v46, 10, v54\nv_xor_b32 v55, 64, v54")
    a("v_lshrrev_b32 v46, 2, v1\nv_and_b32 v47, 2, v3\nv_and_b32 v56, 3, v1\nv_xor_b32 v56, v56, v47\nv_lshlrev_b32 v56, 4, v56\nv_mul_u32_u24 v46, 3584, v46\nv_add_u32 v56, v56, v46")
    a(f"s_and_b32 s{sT1}, s{sW}, 1\ns_lshl_b32 s{sT1}, s{sT1}, 1\ns_and_b32 s{sT2}, s{sW}, 2\ns_lshl_b32 s{sT2}, s{sT2}, 2\ns_or_b32 s{sT1}, s{sT1}, s{sT2}")
    a(f"v_xor_b32 v45, s{sT1}, v2\nv_lshlrev_b32 v45, 4, v45\nv_lshl_or_b32 v45, v3, 12, v45")
    a(f"s_and_b32 s{sT1}, s{sW}, 3\ns_lshl_b32 s{sT1}, s{sT1}, 10\ns_and_b32 s{sT2}, s{sW}, 4\ns_lshl_b32 s{sT2}, s{sT2}, 12\ns_or_b32 s{sT1}, s{sT1}, s{sT2}\nv_or_b32 v45, s{sT1}, v45")
    a("v_xor_b32 v46, 0x110, v45\nv_xor_b32 v47, 0x240, v45\nv_xor_b32 v48, 0x350, v45\nv_lshlrev_b32 v44, 4, v1")
    a(f"s_lshr_b32 s{sT0}, s{sX}, 2\ns_lshl_b32 s{sT0}, s{sT0}, 3\ns_add_u32 s{sT0}, s{sT0}, s{sW}\ns_lshl_b32 s{sT0}, s{sT0}, 12\ns_add_u32 s{sT0}, s{sT0}, {H3}")
    a("s_waitcnt vmcnt(8)")
    def h3_loads():
        for j in range(4): a(f"buffer_load_dwordx4 {vr(192+4*j,4)}, v44, {R('ws')}, s{sT0} offen offset:{j*1024} sc1")
    for t in range(8): a(f"ds_read_b128 {vr(64+4*t,4)}, v{8+(t&3)} offset:{(t>>2)*4096}")
    a(f"v_and_b32 v49, 1, v3\nv_lshlrev_b32 v49, 9, v49\nv_lshl_or_b32 v49, v2, 5, v49\ns_lshl_b32 s{sT2}, s{sW}, 2\nv_add_u32 v59, s{sT2}, v49")
    if FULLST: a("v_and_b32 v50, 7, v2\nv_lshlrev_b32 v50, 10, v50\nv_lshl_or_b32 v50, v3, 4, v50\nv_lshrrev_b32 v51, 3, v2\nv_lshl_or_b32 v50, v51, 6, v50\nv_lshlrev_b32 v51, 3, v2")
    else: a("v_lshlrev_b32 v50, 10, v2\nv_lshl_or_b32 v50, v3, 4, v50\nv_lshlrev_b32 v51, 3, v2")
    for i in range(4): a(f"v_mov_b32 v{248+i}, 0x3f803f80")
    a(f"s_and_b32 s{sT1}, s{sW}, 1\ns_lshl_b32 s{sT1}, s{sT1}, 7\ns_add_u32 s{sT2}, s{sT1}, s{sB}\ns_lshl_b32 s{sT3}, s{sT2}, 7\ns_add_u32 s{sT3}, s{sT3}, {ML}")
    a(f"s_lshl_b32 s{sT2}, s{sT2}, 14\ns_lshl_b32 s{sCQ}, s{sW}, 7\ns_add_u32 s{sT2}, s{sT2}, s{sCQ}\ns_xor_b32 s{sCQ}, s{sT2}, {128<<14}\ns_add_u32 s{sT2}, s{sT2}, {H4}\ns_add_u32 s{sCQ}, s{sCQ}, {H4}")
    a(f"s_lshl_b32 s{sH}, s{sX}, 3\ns_cmp_ge_u32 s{sP}, 8\ns_cselect_b32 s{sH}, s{sH}, 64\ns_and_b32 s{sP}, s{sP}, 7\ns_add_u32 s{sH}, s{sH}, s{sP}")
    a(f"s_lshl_b32 s{sKVW}, s{sW}, 12\ns_add_u32 s{sKVW}, s{sKVW}, {B2L}")
    for q in (2, 3):
        a(f"s_waitcnt vmcnt({12-4*q})")
        for t in range(4 * q, 4 * q + 4): a(f"ds_read_b128 {vr(64+4*t,4)}, v{8+(t&3)} offset:{(t>>2)*4096}")
    stamp("kvok")
    cnt_check(False, "AC")
    a("s_barrier")
    stamp("acnt")
    if CLRPOS == 2:
        for so in (sT2, sCQ):
            a(f"buffer_store_dwordx4 v[40:43], v50, {R('ws')}, s{so} offen sc1\ns_add_u32 s{sE0}, s{so}, 8192")
            a(f"buffer_store_dwordx4 v[40:43], v50, {R('ws')}, s{sE0} offen sc1")
    h3_loads()
    for u in range(4):
        for i in range(4):
            for hh in range(2):
                a(f"ds_read_b64_tr_b16 {vr(128+16*u+4*i+2*hh,2)}, v{16+8*(u>>1)+2*i+hh} offset:{(u&1)*32768}")
    a(f"s_lshl_b32 s{sT1}, s{sT1}, 5")
    for t in range(4): a(f"v_or_b32 v{8+t}, s{sT1}, v{4+t}\nv_xor_b32 v{12+t}, 0x1000, v{8+t}")
    a("s_branch H3W\nH3L:")
    h3_loads()
    a("H3W:\ns_waitcnt vmcnt(0)")
    check([193 + 2 * i for i in range(8)], 52, "H3L", "H3OK")
    a("H3OK:")
    stamp("h3ok")
    for j in range(4): a(f"ds_write_b128 v{45+j}, {vr(192+4*j,4)} offset:{QL}")
    a("s_waitcnt lgkmcnt(0)\ns_barrier")
    stamp("qlbar")
    NB = 12
    def qrd(k): a(f"ds_read_b128 {vr(192+4*(k%NB),4)}, v{4+((k>>1)&3)} offset:{QL+(k&1)*16384+(k>>3)*4096}")
    for k in range(NB): qrd(k)
    def w2_dma():
        a(f"s_lshl_b32 s{sT0}, s{sH}, 15\ns_lshl_b32 s{sT1}, s{sW}, 7\ns_add_u32 s{sT0}, s{sT0}, s{sT1}")
        for g in range(4):
            a(f"s_add_u32 m0, s{sKVW}, {32768+g*1024}")
            if g: a(f"s_add_u32 s{sT0}, s{sT0}, 8192")
            a(f"buffer_load_dwordx4 v{54+(g&1)}, {R('w2')}, s{sT0} offen nt lds")
    if W2E:
        a(f"s_cmp_ge_u32 s{sH}, 56\ns_cbranch_scc1 NOW2")
        w2_dma()
        a("NOW2:")
    for k in range(32):
        a(f"s_waitcnt lgkmcnt({min(NB-1 if k == 0 else NB-2, 31-k)})")
        mfma(240 + 4 * (k & 1), 64 + 4 * (k >> 1), 192 + 4 * (k % NB), "0" if k < 2 else None)
        if k >= 1 and k - 1 + NB < 32: qrd(k - 1 + NB)
    a("v_max3_f32 v52, v240, v241, v242\nv_max_f32 v52, v52, v243\nv_max3_f32 v53, v244, v245, v246\nv_max_f32 v53, v53, v247")
    a("v_permlane16_swap_b32 v52, v53\nv_max_f32 v52, v52, v53\nv_mov_b32 v53, v52\nv_permlane32_swap_b32 v52, v53\nv_max_f32 v52, v52, v53")
    a(f"s_mov_b32 exec_hi, 0\nds_write_b32 v59, v52 offset:{MXA}")
    exec_all()
    a("s_waitcnt lgkmcnt(0)\ns_barrier")
    stamp("mxbar")
    a(f"ds_read_b128 v[36:39], v49 offset:{MXA}\nds_read_b128 v[40:43], v49 offset:{MXA+16}")
    a(f"s_bitcmp1_b32 s{sW}, 0\ns_cselect_b64 vcc, -1, 0")
    a("s_waitcnt lgkmcnt(1)\nv_max3_f32 v52, v36, v37, v38\ns_waitcnt lgkmcnt(0)\nv_max3_f32 v53, v39, v40, v41\nv_max3_f32 v52, v52, v42, v43\nv_max_f32 v52, v52, v53")
    a("v_mov_b32 v53, v52\nv_permlane16_swap_b32 v52, v53")
    for i in range(8): a(f"v_sub_f32 v{240+i}, v{240+i}, v{52+(i>>2)}")
    for i in range(8): a(f"v_exp_f32 v{240+i}, v{240+i}")
    for ht in range(2):
        a(f"v_cvt_pk_bf16_f32 v{240+4*ht}, v{240+4*ht}, v{241+4*ht}\nv_cvt_pk_bf16_f32 v{241+4*ht}, v{242+4*ht}, v{243+4*ht}")
        a(f"ds_write_b64 v61, {vr(240+4*ht,2)} offset:{PA+ht*4096}")
    a("v_cndmask_b32 v52, v52, v53, vcc")
    a("s_waitcnt lgkmcnt(0)\ns_barrier")
    stamp("pbar")
    for k in range(8): a(f"ds_read_b128 {vr(192+4*k,4)}, v{8+k} offset:{PA}")
    a(f"s_cmp_ge_u32 s{sW}, 2\ns_cbranch_scc1 NOL")
    for u in range(4):
        a(f"s_waitcnt lgkmcnt({7-u})")
        mfma(96, 248, 192 + 4 * u, "0" if u == 0 else None)
    a("NOL:")
    def ostore(j):
        o, pk = 64 + 16 * j, 100 + 8 * j
        for i in range(4): a(f"v_cvt_pk_bf16_f32 v{pk+2*i}, v{o+4*i}, v{o+1+4*i}\nv_cvt_pk_bf16_f32 v{pk+1+2*i}, v{o+2+4*i}, v{o+3+4*i}")
        so = sCQ if j else sT2
        if FULLST:
            for r in range(4): a(f"v_mov_b32 v{116+r}, v{pk+r}")
            for r in range(4): a(f"v_mov_b32_dpp v{pk+r}, v{pk+4+r} row_ror:8 row_mask:0xf bank_mask:0xc")
            a(f"buffer_store_dwordx4 {vr(pk,4)}, v50, {R('ws')}, s{so} offen sc1")
            for r in range(4): a(f"v_mov_b32_dpp v{pk+4+r}, v{116+r} row_ror:8 row_mask:0xf bank_mask:0x3")
            a(f"s_add_u32 s{so}, s{so}, 8192")
            a(f"buffer_store_dwordx4 {vr(pk+4,4)}, v50, {R('ws')}, s{so} offen sc1")
        else:
            for k in range(2): a(f"buffer_store_dwordx4 {vr(pk+4*k,4)}, v50, {R('ws')}, s{so} offen offset:{k*64} sc1")
    for j in range(2):
        for u in range(4):
            a(f"s_waitcnt lgkmcnt({7-4*j-u})")
            for i in range(4): mfma(64 + 16 * j + 4 * i, 128 + 16 * u + 4 * i, 192 + 16 * j + 4 * u, "0" if u == 0 else None)
            if j == 0 and u == 0:
                a(f"v_mov_b32 v53, v96\ns_cmp_lt_u32 s{sW}, 2\ns_cselect_b64 exec, 0xffff, 0")
                a(f"buffer_store_dwordx2 v[52:53], v51, {R('ws')}, s{sT3} offen sc1")
                exec_all()
            if j == 1 and u == 0: ostore(0)
    ostore(1)
    stamp("h4st")
    a(f"s_cmp_ge_u32 s{sH}, 56\ns_cbranch_scc1 FIN")
    if MB == 2: a("s_waitcnt vmcnt(0)")
    if MB: a("s_barrier")
    w1_dma(0)
    if not W2E: w2_dma()
    w1_dma(1)
    a("v_lshrrev_b32 v47, 2, v2\nv_and_b32 v48, 2, v47\nv_and_b32 v49, 1, v3\nv_lshl_or_b32 v48, v49, 2, v48\nv_bfe_u32 v49, v2, 1, 1\nv_or_b32 v48, v48, v49\nv_lshlrev_b32 v48, 4, v48")
    a(f"v_and_b32 v49, 1, v2\nv_lshl_or_b32 v48, v49, 3, v48\nv_lshl_add_u32 v50, v3, 3, v47\nv_lshl_or_b32 v44, v50, 7, v48\nv_add_u32 v44, s{sKVW}, v44")
    for i in range(1, 4): a(f"v_xor_b32 v{44+i}, {i<<5}, v44")
    a("v_and_b32 v49, 1, v3\nv_lshlrev_b32 v60, 4, v2\nv_lshl_or_b32 v60, v49, 3, v60\nv_lshrrev_b32 v49, 1, v3\nv_lshl_or_b32 v60, v49, 8, v60")
    a(f"v_and_b32 v49, 31, v1\nv_lshlrev_b32 v49, 1, v49\ns_lshl_b32 s{sT0}, s{sH}, 6\ns_and_b32 s{sB6}, s{sW}, 1\ns_lshl_b32 s{sT1}, s{sB6}, 10")
    a(f"s_bfe_u32 s{sCQ}, s{sH}, 0x10003\ns_lshl_b32 s{sT2}, s{sCQ}, 9")
    a(f"buffer_load_ushort v40, v49, {R('b1')}, s{sT0} offen")
    a(f"buffer_load_dwordx2 v[36:37], v60, {R('x')}, s{sT1} offen\nbuffer_load_dwordx2 v[38:39], v60, {R('x')}, s{sT1} offen offset:512")
    a(f"buffer_load_dwordx2 v[42:43], v60, {R('b2')}, s{sT2} offen")
    a("v_lshrrev_b32 v50, 2, v2\nv_lshl_add_u32 v50, v3, 3, v50\nv_and_b32 v48, 3, v2\nv_lshlrev_b32 v48, 3, v48\nv_and_b32 v49, 1, v3\nv_lshl_or_b32 v48, v49, 5, v48")
    a(f"v_lshl_or_b32 v48, v50, 6, v48\nv_add_u32 v48, s{sKVW}, v48\nv_xor_b32 v49, 32, v48")
    a(f"v_and_b32 v41, 1, v2\nv_lshlrev_b32 v50, 10, v41\nv_lshl_or_b32 v50, v3, 4, v50\ns_lshl_b32 s{sT0}, s{sW}, 7\nv_add_u32 v50, s{sT0}, v50")
    a(f"v_bfe_u32 v51, v2, 1, 1\nv_lshlrev_b32 v51, 6, v51\nv_lshl_or_b32 v51, v41, 7, v51\nv_lshl_or_b32 v51, v3, 4, v51\ns_lshl_b32 s{sT1}, s{sW}, 8\nv_add_u32 v51, s{sT1}, v51")
    a(f"v_lshlrev_b32 v52, 2, v1\nv_lshl_add_u32 v53, v1, 1, s{sT0}\nv_lshlrev_b32 v57, 6, v41\nv_lshl_or_b32 v57, v3, 4, v57\nv_add_u32 v57, s{sT0}, v57")
    a("v_mul_u32_u24 v58, 57344, v41\nv_lshrrev_b32 v41, 1, v2\nv_lshl_add_u32 v58, v41, 5, v58\nv_lshl_add_u32 v58, v3, 3, v58")
    a("v_lshlrev_b32 v59, 4, v2\nv_lshl_or_b32 v59, v3, 10, v59")
    for i in range(32): a(f"v_mov_b32 v{192+i}, 0")
    a("v_cmp_gt_u32 vcc, 8, v2")
    for r in range(4): a(f"v_and_b32 v{224+r}, 0x3f803f80, v{32+r}")
    for r in range(4): a(f"v_cndmask_b32 v{228+r}, 0, v{224+r}, vcc\nv_xor_b32 v{232+r}, v{228+r}, v{224+r}")
    a("s_waitcnt vmcnt(0)")
    for tau in range(2):
        for ft in range(2):
            for hh in range(2): a(f"ds_read_b64_tr_b16 {vr(64+8*tau+4*ft+2*hh,2)}, v{48+ft} offset:{tau*2048+hh*256}")
    for i in range(4):
        for hh in range(2): a(f"ds_read_b64_tr_b16 {vr(80+4*i+2*hh,2)}, v{44+i} offset:{32768+hh*512}")
    a(f"s_cmp_ge_u32 s{sW}, 2\ns_cbranch_scc1 MLP_Y")
    a(f"s_lshl_b32 s{sT1}, s{sW}, 12\ns_add_u32 s{sT1}, s{sT1}, {HM}")
    a("HML:")
    for k in range(4):
        a(f"s_add_u32 s{sT0}, s{sT1}, {k*8192}")
        for be in range(4): a(f"buffer_load_dwordx4 {vr(128+16*k+4*be,4)}, v59, {R('ws')}, s{sT0} offen offset:{be*256} sc1")
    a("s_waitcnt vmcnt(0)")
    check([129 + 2 * i for i in range(32)], 41, "HML", "HMOK")
    a("HMOK:")
    stamp("hmok")
    for k in range(4):
        for be in range(4): mfma(96 + 8 * k + 4 * (be >> 1), 228 + 4 * (be & 1), 128 + 16 * k + 4 * be, "0" if (be & 1) == 0 else None)
    a(f"s_lshl_b32 s{sT1}, s{sW}, 14\ns_add_u32 s{sT1}, s{sT1}, {H5}")
    for i in range(4): a(f"v_lshlrev_b32 v{240+2*i}, 16, v{36+i}\nv_and_b32 v{241+2*i}, 0xffff0000, v{36+i}")
    for i in range(8): a(f"v_add_f32 v{112+i}, 1.0, v{112+i}")
    a("H5L:")
    for i in range(4):
        a(f"s_add_u32 s{sT0}, s{sT1}, {i*4096}")
        for be in range(4): a(f"buffer_load_dwordx4 {vr(128+16*i+4*be,4)}, v59, {R('ws')}, s{sT0} offen offset:{be*256} sc1")
    for i in range(4):
        for be in range(4):
            k = 4 * i + be
            a(f"s_waitcnt vmcnt({15-k})")
            mfma(248 + 4 * (be >> 1), 228 + 4 * (be & 1), 128 + 4 * k, "0" if (i == 0 and (be & 1) == 0) else None)
            a(f"v_max3_u32 v41, v{41 if k else 129}, v{129+4*k}, v{131+4*k}")
    check([41], 41, "H5L", "H5OK")
    a("H5OK:")
    stamp("h5ok")
    for i in range(8): a(f"v_fmac_f32 v{240+i}, v{96+i}, v{248+i}")
    def ln(src, dst):
        a(f"v_pk_add_f32 v[36:37], {vr(src,2)}, {vr(src+2,2)}\nv_pk_mul_f32 v[38:39], {vr(src,2)}, {vr(src,2)}")
        for i in range(1, 4):
            if i > 1: a(f"v_pk_add_f32 v[36:37], v[36:37], {vr(src+2*i,2)}")
            a(f"v_pk_fma_f32 v[38:39], {vr(src+2*i,2)}, {vr(src+2*i,2)}, v[38:39]")
        a("v_add_f32 v36, v36, v37\nv_add_f32 v38, v38, v39")
        red_dpp("v_add_f32", [36, 38], R16)
        red_s("v_add_f32", [36, 38], [37, 39])
        a(f"v_mul_f32 v36, {hex(f2u(1/512))}, v36\nv_mov_b32 v37, {hex(f2u(1e-5))}\nv_fmac_f32 v37, {hex(f2u(1/512))}, v38")
        a("v_fma_f32 v37, -v36, v36, v37\nv_rsq_f32 v37, v37")
        for i in range(8): a(f"v_sub_f32 v{dst+i}, v{src+i}, v36")
        for i in range(8): a(f"v_mul_f32 v{dst+i}, v{dst+i}, v37")
    ln(240, 128)
    for i in range(8): a(f"v_fma_f32 v{128+i}, v{128+i}, v{112+i}, v{104+i}")
    ln(128, 128)
    for i in range(4): a(f"v_cvt_pk_bf16_f32 v{128+i}, v{128+2*i}, v{129+2*i}")
    a(f"s_lshl_b32 s{sT0}, s{sW}, 10\nv_add_u32 v41, s{sT0}, v60")
    a(f"ds_write_b64 v41, v[128:129] offset:{YL}\nds_write_b64 v41, v[130:131] offset:{YL+512}")
    a("MLP_Y:")
    a("s_waitcnt lgkmcnt(0)\ns_barrier")
    stamp("ybar")
    for ft in range(2):
        m = hex(0x00030003 << (2 * ft)); exec_set(m, m)
        for tau in range(2): a(f"ds_read_b128 {vr(192+8*tau+4*ft,4)}, v50 offset:{YL+tau*64}")
    exec_all()
    a(f"s_lshl_b32 s{sT0}, s{sH}, 10\ns_lshl_b32 s{sT1}, s{sW}, 7\ns_add_u32 s{sT0}, s{sT0}, s{sT1}\ns_add_u32 s{sT0}, s{sT0}, {H7}")
    a("v_lshlrev_b32 v40, 16, v40")
    k = 0
    for ft in range(2):
        for tau in range(2):
            a(f"s_waitcnt lgkmcnt({3-k})")
            mfma(136, 64 + 8 * tau + 4 * ft, 192 + 8 * tau + 4 * ft, "0" if k == 0 else None); k += 1
    exec_set("0x000f000f", "0x000f000f")
    a(f"ds_write_b128 v51, v[136:139] offset:{RED}")
    exec_all()
    a("s_waitcnt lgkmcnt(0)\ns_barrier")
    for k in range(4): a(f"ds_read2st64_b32 {vr(136+2*k,2)}, v52 offset0:{2*k} offset1:{2*k+1}")
    a("s_waitcnt lgkmcnt(2)\nv_pk_add_f32 v[136:137], v[136:137], v[138:139]\ns_waitcnt lgkmcnt(0)\nv_pk_add_f32 v[140:141], v[140:141], v[142:143]")
    a("v_add_f32 v136, v136, v40\nv_pk_add_f32 v[136:137], v[136:137], v[140:141]\nv_add_f32 v136, v136, v137")
    G0 = -2 * 0.7978845608028654 * LOG2E
    a(f"v_mul_f32 v137, v136, v136\nv_mov_b32 v138, {hex(f2u(G0))}\nv_fmac_f32 v138, {hex(f2u(G0*0.044715))}, v137\nv_mul_f32 v137, v136, v138")
    a("v_exp_f32 v137, v137\nv_add_f32 v137, 1.0, v137\nv_rcp_f32 v137, v137\nv_mul_f32 v136, v136, v137\nv_cvt_pk_bf16_f32 v136, v136, v136")
    a(f"ds_write_b16 v53, v136 offset:{HID}")
    for i in range(4):
        m = hex(0x00030003 << (2 * i)); exec_set(m, m)
        a(f"ds_read_b128 {vr(208+4*i,4)}, v57 offset:{HID}")
    exec_all()
    for i in range(4):
        a(f"s_waitcnt lgkmcnt({3-i})")
        mfma(136, 80 + 4 * i, 208 + 4 * i, "0" if i == 0 else None)
    a("v_cvt_pk_bf16_f32 v136, v136, v137\nv_cvt_pk_bf16_f32 v137, v138, v139")
    exec_set("0x00ff00ff", "0x00ff00ff")
    a(f"buffer_store_dwordx2 v[136:137], v58, {R('ws')}, s{sT0} offen sc1")
    exec_all()
    stamp("h7pub")
    a("v_lshrrev_b32 v48, 3, v1\nv_and_b32 v49, 7, v1\nv_lshlrev_b32 v49, 4, v49\nv_lshl_or_b32 v48, v48, 10, v49")
    a(f"s_cmp_ge_u32 s{sH}, 16\ns_cbranch_scc1 FIN\ns_and_b32 s{sT0}, s{sH}, 1\ns_cmp_lg_u32 s{sT0}, s{sW}\ns_cbranch_scc1 FIN")
    a(f"s_cmp_eq_u32 s{sCQ}, 0\ns_cbranch_scc1 F_D0")
    for i in range(4): a(f"v_mov_b32 v{240+i}, v{244+i}\nv_mov_b32 v{120+i}, v{124+i}")
    a("F_D0:")
    a("v_lshlrev_b32 v244, 16, v42\nv_and_b32 v245, 0xffff0000, v42\nv_lshlrev_b32 v246, 16, v43\nv_and_b32 v247, 0xffff0000, v43")
    for i in range(4): a(f"v_fmac_f32 v{240+i}, v{120+i}, v{244+i}")
    a(f"s_mul_i32 s{sT1}, s{sW}, 57344\ns_lshr_b32 s{sT0}, s{sH}, 1\ns_lshl_b32 s{sT2}, s{sT0}, 7\ns_add_u32 s{sT1}, s{sT1}, s{sT2}\ns_add_u32 s{sT1}, s{sT1}, {H7}")
    a(f"s_and_b32 s{sT2}, s{sT0}, 1\ns_lshl_b32 s{sT2}, s{sT2}, 3\ns_lshl_b32 s{sT2}, 0x00ff00ff, s{sT2}\ns_bitcmp1_b32 s{sT0}, 1\ns_cselect_b32 s{sE0}, 0, s{sT2}\ns_cselect_b32 s{sE0+1}, s{sT2}, 0")
    a(f"s_lshl_b32 s{sT2}, s{sW}, 10\ns_lshl_b32 s{sT3}, s{sCQ}, 9\ns_add_u32 s{sT2}, s{sT2}, s{sT3}")
    a("s_waitcnt vmcnt(0)")
    a("H7L:")
    for i in range(7):
        a(f"s_add_u32 s{sT0}, s{sT1}, {i*8192}")
        a(f"buffer_load_dwordx4 {vr(128+4*i,4)}, v48, {R('ws')}, s{sT0} offen sc1")
    for i in range(7):
        a(f"s_waitcnt vmcnt({6-i})")
        mfma(248, 224, 128 + 4 * i, "0" if i == 0 else None)
        a(f"v_max3_u32 v41, v{41 if i else 129}, v{129+4*i}, v{131+4*i}")
    check([41], 41, "H7L", "H7OK")
    a("H7OK:")
    stamp("h7ok")
    red_dpp("v_add_f32", [248, 249, 250, 251], ["row_ror:8"])
    for i in range(4): a(f"v_fmac_f32 v{240+i}, v{120+i}, v{248+i}")
    a("v_cvt_pk_bf16_f32 v240, v240, v241\nv_cvt_pk_bf16_f32 v241, v242, v243")
    a(f"s_mov_b64 exec, s[{sE0}:{sE0+1}]")
    a(f"buffer_store_dwordx2 v[240:241], v60, {R('out')}, s{sT2} offen")
    a("s_branch FIN")
    a("BPATH:")
    a(f"s_lshl_b32 s{sH}, s{sX}, 2\ns_lshr_b32 s{sT0}, s{sP}, 2\ns_add_u32 s{sH}, s{sH}, s{sT0}\ns_and_b32 s{sCQ}, s{sP}, 3")
    a("v_lshlrev_b32 v44, 4, v2\nv_lshl_or_b32 v44, v3, 16, v44")
    a(f"s_lshl_b32 s{sT0}, s{sW}, 19\ns_lshl_b32 s{sT1}, s{sH}, 8\ns_add_u32 s{sT0}, s{sT0}, s{sT1}")
    a(f"s_lshl_b32 s{sT2}, s{sCQ}, 17\ns_and_b32 s{sT2}, s{sT2}, 0x40000\ns_add_u32 s{sT0}, s{sT0}, s{sT2}")
    a(f"s_lshl_b32 s{sT2}, s{sCQ}, 3\ns_add_u32 s{sT2}, s{sT2}, s{sW}\ns_lshl_b32 s{sT2}, s{sT2}, 17\ns_add_u32 s{sT1}, s{sT1}, s{sT2}")
    a("v_lshl_add_u32 v48, v3, 13, v36")
    for g in range(1, 4): a(f"v_xor_b32 v{48+g}, {((g&1)*32)|((g>>1)*128)|(g*32768)}, v48")
    srd("wq", "wuk")
    a("v_lshlrev_b32 v45, 4, v2\nv_lshl_or_b32 v45, v3, 14, v45")
    a(f"s_and_b32 s{sB}, s{sH}, 16\ns_add_u32 s{sB}, s{sB}, s{sW}\ns_lshl_b32 s{sB6}, s{sB}, 7\ns_and_b32 s{sT3}, s{sH}, 15\ns_add_u32 s{sB6}, s{sB6}, s{sT3}")
    a(f"s_lshl_b32 s{sCK}, s{sB6}, 3\ns_lshl_b32 s{sB6}, s{sB6}, 2\ns_add_u32 s{sB6}, s{sB6}, s{sCQ}\ns_lshl_b32 s{sB6}, s{sB6}, 8\ns_add_u32 s{sB6}, s{sB6}, {H4}\ns_add_u32 s{sCK}, s{sCK}, {ML}")
    a(f"s_bitcmp1_b32 s{sCQ}, 0")
    stamp("prol")
    a("s_waitcnt lgkmcnt(0)\ns_cbranch_scc1 BQ1")
    H4O = [0, 0x10000, 0x100000, 0x110000]
    def clr():
        for i in range(4):
            a(f"s_add_u32 s{sT3}, s{sB6}, {H4O[i]}")
            a(f"buffer_store_dwordx4 v[40:43], v45, {R('ws')}, s{sT3} offen sc1")
    def wq_issue(rot):
        def ld(g, r):
            r ^= rot
            a(f"s_xor_b32 s{sT3}, s{sT0}, {g*262144+r*8192}")
            a(f"buffer_load_dwordx4 {vr(64+32*g+4*r,4)}, v44, {R('wq')}, s{sT3} offen{nt('wq')}")
        for r in range(4): ld(0, r)
        for g in range(4):
            a(f"s_add_u32 m0, s{sKVW}, {g*1024}")
            a(f"buffer_load_dwordx4 v{48+g}, {R('wuk')}, s{sT1} offen nt lds")
        if CLRPOS == 0: clr()
        for r in range(4, 8): ld(0, r)
        cnt_load()
        for r in range(8): ld(1, r)
    wq_issue(0)
    a("s_branch BQ2\nBQ1:")
    wq_issue(4)
    a("BQ2:")
    NC = 4 if CLRPOS == 1 else 0
    if NC: clr()
    stamp("wqiss")
    a(f"s_and_b32 s{sSZW}, s{sW}, 1\ns_and_b32 s{sT0}, s{sW}, 2\ns_lshl_b32 s{sT0}, s{sT0}, 1\ns_or_b32 s{sSZW}, s{sSZW}, s{sT0}")
    a(f"s_and_b32 s{sT0}, s{sW}, 4\ns_lshr_b32 s{sT0}, s{sT0}, 1\ns_or_b32 s{sSZW}, s{sSZW}, s{sT0}")
    late_common()
    srd("wuv", "wo", "wmod", "c")
    a("v_and_b32 v46, 7, v2\nv_lshlrev_b32 v46, 10, v46\nv_lshl_or_b32 v46, v3, 4, v46")
    a(f"s_lshl_b32 s{sT2}, s{sW}, 7\ns_lshl_b32 s{sT3}, s{sCQ}, 5\ns_and_b32 s{sT3}, s{sT3}, 64\ns_or_b32 s{sT2}, s{sT2}, s{sT3}\ns_xor_b32 s{sT3}, s{sT2}, 64")
    a(f"v_and_b32 v47, 1, v3\nv_lshlrev_b32 v47, 3, v47\nv_or_b32 v52, s{sSZW}, v47\nv_xor_b32 v52, v52, v2\nv_or_b32 v47, s{sW}, v47")
    a("v_lshlrev_b32 v47, 8, v47\nv_lshl_or_b32 v47, v52, 4, v47")
    a("v_lshrrev_b32 v53, 3, v2\nv_lshlrev_b32 v53, 15, v53\nv_lshl_or_b32 v53, v3, 3, v53")
    a(f"v_lshrrev_b32 v252, 3, v2\nv_lshlrev_b32 v252, 8, v252\nv_lshl_or_b32 v252, v3, 3, v252\ns_lshl_b32 s100, s{sW}, 5\nv_add_u32 v252, s100, v252\nv_lshlrev_b32 v253, 4, v1")
    a("s_mov_b32 s100, 0x05040100\ns_mov_b32 s101, 0x07060302")
    def transpose(g):
        for j in range(8):
            for rho in range(4):
                a(f"v_perm_b32 v{128+32*g+4*j+rho}, v{64+32*g+4*(2*rho+1)+(j>>1)}, v{64+32*g+4*(2*rho)+(j>>1)}, s{100+(j&1)}")
    a(f"s_waitcnt vmcnt({8+NC})")
    stamp("wq0")
    cnt_check(True, "BC")
    a("s_barrier")
    stamp("bcnt")
    def h1_loads():
        a(f"buffer_load_dwordx4 v[36:39], v46, {R('ws')}, s{sT2} offen sc1\nbuffer_load_dwordx4 v[240:243], v46, {R('ws')}, s{sT3} offen sc1")
    h1_loads()
    for t in range(4): a(f"ds_read_b128 {vr(192+4*t,4)}, v{8+t}")
    transpose(0)
    a(f"s_waitcnt vmcnt({2+NC})")
    stamp("wq")
    transpose(1)
    a("s_branch H1W\nH1L:")
    h1_loads()
    a("H1W:\ns_waitcnt vmcnt(0)")
    check([37, 39, 241, 243], 52, "H1L", "H1OK")
    a("H1OK:")
    stamp("h1ok")
    for g in range(2):
        for j in range(8): mfma(208 + 4 * j, 36 + 204 * g, 128 + 32 * g + 4 * j, "0" if g == 0 else None)
    a("s_waitcnt lgkmcnt(0)")
    stamp("qmf")
    for j in range(8):
        a(f"v_pk_add_f32 {vr(208+4*j,2)}, {vr(208+4*j,2)}, {vr(210+4*j,2)}")
    for j in range(8): a(f"v_add_f32 v{208+4*j}, v{208+4*j}, v{209+4*j}")
    for j in range(4): a(f"v_cvt_pk_bf16_f32 v{56+j}, v{208+8*j}, v{212+8*j}")
    a("s_mov_b32 exec_hi, 0")
    a(f"ds_write_b128 v47, v[56:59] offset:{PB}")
    exec_all()
    a("s_waitcnt lgkmcnt(0)\ns_barrier")
    stamp("qbar")
    for t in range(4): a(f"ds_read_b128 {vr(64+4*t,4)}, v{4+t} offset:{PB}")
    a(f"s_lshl_b32 s{sT0}, s{sH}, 10\ns_lshl_b32 s{sT1}, s{sCQ}, 8\ns_add_u32 s{sT0}, s{sT0}, s{sT1}\ns_lshl_b32 s{sT1}, s{sW}, 5\ns_add_u32 s{sT0}, s{sT0}, s{sT1}\ns_add_u32 s{sT0}, s{sT0}, {H3}")
    for t in range(4):
        a(f"s_waitcnt lgkmcnt({3-t})")
        mfma(208, 192 + 4 * t, 64 + 4 * t, "0" if t == 0 else None)
    red_dpp("v_add_f32", [208, 209, 210, 211], R8)
    for i in range(4): a(f"v_mul_f32 v{208+i}, {hex(f2u(128**-0.5*LOG2E))}, v{208+i}")
    a("v_cvt_pk_bf16_f32 v208, v208, v209\nv_cvt_pk_bf16_f32 v209, v210, v211")
    exec_set("0x01010101", "0x01010101")
    if FL3: pub_line(208, 15, "P3")
    else: a(f"buffer_store_dwordx2 v[208:209], v53, {R('ws')}, s{sT0} offen sc1")
    exec_all()
    stamp("h3pub")
    a("v_lshlrev_b32 v47, 4, v2\nv_lshl_or_b32 v48, v3, 13, v47")
    a(f"s_lshl_b32 s{sT1}, s{sCQ}, 3\ns_add_u32 s{sT1}, s{sT1}, s{sW}\ns_lshl_b32 s{sT1}, s{sT1}, 17\ns_lshl_b32 s{sT2}, s{sH}, 8\ns_add_u32 s{sT1}, s{sT1}, s{sT2}")
    for g in range(4):
        if g: a(f"s_add_u32 s{sT1}, s{sT1}, 32768")
        a(f"buffer_load_dwordx4 {vr(192+4*g,4)}, v48, {R('wuv')}, s{sT1} offen nt")
    a("v_lshrrev_b32 v46, 3, v1\nv_and_b32 v47, 2, v46\nv_and_b32 v54, 7, v1\nv_xor_b32 v54, v54, v47\nv_lshlrev_b32 v54, 4, v54\nv_lshl_or_b32 v54, v46, 10, v54\nv_xor_b32 v55, 64, v54")
    a("v_mul_u32_u24 v57, 24576, v3\nv_lshl_add_u32 v57, v2, 4, v57")
    c_addr(58)
    a(f"s_lshl_b32 s{sKVW}, s{sW}, 12\ns_add_u32 s{sKVW}, s{sKVW}, {B2L}")
    a(f"s_lshl_b32 s{sT0}, s{sX}, 1\ns_lshr_b32 s{sT1}, s{sP}, 3\ns_add_u32 s{sT0}, s{sT0}, s{sT1}\ns_lshl_b32 s{sT0}, s{sT0}, 3\ns_add_u32 s{sT0}, s{sT0}, s{sW}\ns_lshl_b32 s{sT0}, s{sT0}, 15")
    a(f"s_and_b32 s{sT1}, s{sP}, 7\ns_lshl_b32 s{sT1}, s{sT1}, 7\ns_add_u32 s{sT0}, s{sT0}, s{sT1}")
    for g in range(4):
        a(f"s_add_u32 m0, s{sKVW}, {g*1024}")
        if g: a(f"s_add_u32 s{sT0}, s{sT0}, 8192")
        a(f"buffer_load_dwordx4 v{54+(g&1)}, {R('wo')}, s{sT0} offen nt lds")
    a(f"v_lshlrev_b32 v44, 1, v3\nv_xor_b32 v44, v44, v2\nv_lshlrev_b32 v44, 4, v44\nv_lshl_or_b32 v44, v3, 8, v44")
    a(f"s_lshl_b32 s{sT0}, s{sW}, 12\ns_add_u32 s{sT0}, s{sT0}, {KV}\nv_add_u32 v60, s{sT0}, v44\nv_xor_b32 v59, {2048|128}, v60")
    a(f"s_cmp_lt_u32 s{sP}, 8\ns_cbranch_scc1 NOHM")
    a(f"s_and_b32 s{sT0}, s{sP}, 3\ns_lshl_b32 s{sT0}, s{sT0}, 3\ns_add_u32 s{sT0}, s{sT0}, s{sW}\ns_lshl_b32 s{sT1}, s{sT0}, 5\ns_mul_i32 s{sT0}, s{sT0}, {16*6144}")
    a(f"s_lshl_b32 s{sT2}, s{sX}, 1\ns_bfe_u32 s{sT3}, s{sP}, 0x10002\ns_add_u32 s{sT2}, s{sT2}, s{sT3}\ns_lshl_b32 s{sT2}, s{sT2}, 8\ns_add_u32 s{sT0}, s{sT0}, s{sT2}\ns_add_u32 s{sT0}, s{sT0}, 2048")
    a(f"buffer_load_dwordx2 v[112:113], v58, {R('c')}, s{sT1} offen")
    for i in range(4):
        a(f"buffer_load_dwordx4 {vr(96+4*i,4)}, v57, {R('wmod')}, s{sT0} offen nt")
        if i < 3: a(f"s_add_u32 s{sT0}, s{sT0}, 6144")
    a("s_waitcnt vmcnt(9)")
    for g in range(4): a(f"ds_write_b128 v{60-(g>>1)}, {vr(192+4*g,4)} offset:{(g&1)*1024}")
    a("s_waitcnt vmcnt(0)\nv_mov_b32 v59, v45")
    silu_onehot(112, 128, 64)
    a(f"s_lshl_b32 s{sT2}, s{sX}, 1\ns_bfe_u32 s{sT3}, s{sP}, 0x10002\ns_add_u32 s{sT2}, s{sT2}, s{sT3}")
    a(f"s_lshr_b32 s{sT3}, s{sT2}, 2\ns_lshl_b32 s{sT3}, s{sT3}, 13\ns_and_b32 s{sT2}, s{sT2}, 3\ns_lshl_b32 s{sT2}, s{sT2}, 8\ns_add_u32 s{sT3}, s{sT3}, s{sT2}")
    a(f"s_and_b32 s{sT2}, s{sP}, 3\ns_lshl_b32 s{sT2}, s{sT2}, 10\ns_add_u32 s{sT3}, s{sT3}, s{sT2}\ns_add_u32 s{sT3}, s{sT3}, {HM}")
    a("v_and_b32 v49, 1, v3\nv_lshlrev_b32 v50, 4, v2\nv_lshl_or_b32 v50, v49, 3, v50\nv_lshrrev_b32 v49, 1, v3\nv_lshl_or_b32 v50, v49, 12, v50")
    mod_reduce(96, 128)
    a(f"s_cmp_lg_u32 s{sW}, 0\ns_cbranch_scc1 HMDONE")
    sum8(44, RED, 1024, 64)
    a("v_cvt_pk_bf16_f32 v64, v64, v65\nv_cvt_pk_bf16_f32 v65, v66, v67")
    a(f"buffer_store_dwordx2 v[64:65], v50, {R('ws')}, s{sT3} offen sc1")
    a("HMDONE:\nv_mov_b32 v45, v59\ns_branch HM2\nNOHM:")
    a("s_waitcnt vmcnt(4)")
    for g in range(4): a(f"ds_write_b128 v{60-(g>>1)}, {vr(192+4*g,4)} offset:{(g&1)*1024}")
    a("s_waitcnt vmcnt(0) lgkmcnt(0)\ns_barrier\nHM2:")
    stamp("b2")
    a("v_lshrrev_b32 v47, 2, v2\nv_and_b32 v48, 1, v3\nv_lshl_or_b32 v48, v48, 2, v47\nv_lshlrev_b32 v48, 1, v48")
    a(f"v_bfe_u32 v49, v2, 1, 1\ns_lshl_b32 s{sT0}, s{sW}, 1\nv_or_b32 v49, s{sT0}, v49\nv_xor_b32 v48, v48, v49\nv_lshlrev_b32 v48, 4, v48")
    a(f"v_and_b32 v49, 1, v2\nv_lshl_or_b32 v48, v49, 3, v48\nv_lshl_add_u32 v49, v3, 3, v47\nv_lshl_or_b32 v46, v49, 8, v48\nv_add_u32 v46, {KV}, v46")
    for t in range(4):
        for hh in range(2): a(f"ds_read_b64_tr_b16 {vr(96+4*t+2*hh,2)}, v46 offset:{t*8192+hh*1024}")
    a("v_mov_b32 v58, v45")
    a("v_lshrrev_b32 v47, 2, v2\nv_and_b32 v48, 2, v47\nv_and_b32 v49, 1, v3\nv_lshl_or_b32 v48, v49, 2, v48\nv_bfe_u32 v49, v2, 1, 1\nv_or_b32 v48, v48, v49\nv_lshlrev_b32 v48, 4, v48")
    a(f"v_and_b32 v49, 1, v2\nv_lshl_or_b32 v48, v49, 3, v48\nv_lshl_add_u32 v50, v3, 3, v47\nv_lshl_or_b32 v44, v50, 7, v48\nv_add_u32 v44, s{sKVW}, v44")
    for i in range(1, 4): a(f"v_xor_b32 v{44+i}, {i<<5}, v44")
    for i in range(4):
        for hh in range(2): a(f"ds_read_b64_tr_b16 {vr(64+4*i+2*hh,2)}, v{44+i} offset:{hh*512}")
    a("v_lshrrev_b32 v48, 3, v2\nv_lshlrev_b32 v49, 13, v48\nv_lshl_or_b32 v49, v3, 7, v49\nv_lshlrev_b32 v60, 10, v48\nv_lshl_or_b32 v60, v3, 3, v60")
    a(f"v_lshrrev_b32 v48, 1, v3\nv_lshlrev_b32 v48, 3, v48\nv_or_b32 v51, s{sW}, v48\nv_xor_b32 v50, v48, v2\nv_xor_b32 v50, s{sSZW}, v50\nv_lshlrev_b32 v50, 4, v50\nv_lshl_or_b32 v50, v51, 8, v50")
    a(f"v_xor_b32 v51, v2, v3\nv_and_b32 v51, 1, v51\nv_lshl_or_b32 v50, v51, 3, v50\nv_lshlrev_b32 v59, 3, v2\ns_lshl_b32 s{sT3}, s{sW}, 3\nv_add_u32 v51, s{sT3}, v59")
    a("v_cmp_gt_u32 vcc, 8, v2")
    for r in range(4): a(f"v_cndmask_b32 v{224+r}, 0, v{32+r}, vcc\nv_xor_b32 v{228+r}, v{224+r}, v{32+r}")
    a(f"s_add_u32 s{sT1}, s{sB6}, {H4O[1]}\ns_add_u32 s{sT2}, s{sB6}, {H4O[2]}\ns_add_u32 s{sT3}, s{sB6}, {H4O[3]}")
    stamp("h4poll")
    a("MLL:")
    a(f"buffer_load_dwordx2 v[44:45], v49, {R('ws')}, s{sCK} offen sc1\nbuffer_load_dwordx2 v[46:47], v49, {R('ws')}, s{sCK} offen offset:512 sc1")
    a("s_waitcnt vmcnt(0)")
    check([45, 47], 82, "MLL", "MLOK")
    a("MLOK:")
    stamp("mlok")
    def h4_loads():
        for i, so in enumerate((sB6, sT1, sT2, sT3)): a(f"buffer_load_dwordx4 {vr(128+4*i,4)}, v58, {R('ws')}, s{so} offen sc1")
    h4_loads()
    a("v_max_f32 v52, v44, v46")
    red_s("v_max_f32", [52], [53])
    a("v_sub_f32 v80, v44, v52\nv_sub_f32 v81, v46, v52\nv_exp_f32 v80, v80\nv_exp_f32 v81, v81")
    a("v_cvt_pk_bf16_f32 v80, v80, v80\nv_cvt_pk_bf16_f32 v81, v81, v81")
    for i in range(4):
        for r in range(4): a(f"v_and_b32 v{144+4*i+r}, v{80+(i&1)}, v{224+4*(i>>1)+r}")
    a("v_and_b32 v80, 0xffff0000, v80\nv_and_b32 v81, 0xffff0000, v81\nv_mul_f32 v53, v80, v45\nv_fmac_f32 v53, v81, v47")
    red_s("v_add_f32", [53], [82])
    a(f"s_mov_b64 exec, 0x0101\nds_write_b64 v51, v[52:53] offset:{MLW}")
    exec_all()
    a(f"s_lshl_b32 s{sT0}, s{sH}, 3\ns_add_u32 s{sT0}, s{sT0}, s{sCQ}\ns_lshl_b32 s{sT0}, s{sT0}, 3\ns_add_u32 s{sT0}, s{sT0}, s{sW}\ns_lshl_b32 s{sT0}, s{sT0}, 5\ns_add_u32 s{sT0}, s{sT0}, {H4B}")
    a("s_branch H4W\nH4L:")
    h4_loads()
    a("H4W:")
    for i in range(4):
        a(f"s_waitcnt vmcnt({3-i})")
        mfma(208, 144 + 4 * i, 128 + 4 * i, "0" if i == 0 else None)
    check([131, 135, 139, 143], 82, "H4L", "H4OK")
    a("H4OK:")
    stamp("h4ok")
    a("v_cvt_pk_bf16_f32 v208, v208, v209\nv_cvt_pk_bf16_f32 v209, v210, v211")
    a(f"ds_write_b64 v50, v[208:209] offset:{PB}")
    a("s_waitcnt lgkmcnt(0)\ns_barrier")
    a(f"ds_read_b64 v[52:53], v59 offset:{MLW}")
    for t in range(4): a(f"ds_read_b128 {vr(80+4*t,4)}, v{4+t} offset:{PB}")
    a("s_waitcnt lgkmcnt(4)")
    a(f"v_max_f32_dpp v44, v52, v52 {R8[0]} {FULL}")
    for t in range(4):
        a(f"s_waitcnt lgkmcnt({3-t})")
        mfma(212, 96 + 4 * t, 80 + 4 * t, "0" if t == 0 else None)
        if t < 2: a(f"v_max_f32_dpp v44, v44, v44 {R8[t+1]} {FULL}")
        if t == 2: a("v_sub_f32 v44, v52, v44\nv_exp_f32 v44, v44")
    a("v_mul_f32 v53, v53, v44")
    red_dpp("v_add_f32", [53], R8)
    a("v_rcp_f32 v53, v53")
    for i in range(4): a(f"v_mul_f32 v{212+i}, v{212+i}, v44")
    red_dpp("v_add_f32", [212, 213, 214, 215], R8)
    for i in range(4): a(f"v_mul_f32 v{212+i}, v{212+i}, v53")
    a("v_cvt_pk_bf16_f32 v212, v212, v213\nv_cvt_pk_bf16_f32 v213, v214, v215")
    exec_set("0x01010101", "0x01010101")
    if FL4: pub_line(212, 10, "P4")
    else: a(f"buffer_store_dwordx2 v[212:213], v60, {R('ws')}, s{sT0} offen sc1")
    exec_all()
    stamp("h4bpub")
    a("v_and_b32 v48, 7, v2\nv_lshlrev_b32 v48, 8, v48\nv_lshl_or_b32 v48, v3, 4, v48")
    a(f"s_lshl_b32 s{sT1}, s{sX}, 1\ns_lshr_b32 s{sT0}, s{sP}, 3\ns_add_u32 s{sT1}, s{sT1}, s{sT0}")
    a(f"s_lshl_b32 s{sT0}, s{sT1}, 1\ns_lshr_b32 s{sT2}, s{sW}, 2\ns_add_u32 s{sT0}, s{sT0}, s{sT2}\ns_lshl_b32 s{sT0}, s{sT0}, 11\ns_and_b32 s{sT2}, s{sW}, 3\ns_lshl_b32 s{sT2}, s{sT2}, 6\ns_add_u32 s{sT0}, s{sT0}, s{sT2}\ns_add_u32 s{sT0}, s{sT0}, {H4B}")
    a(f"s_lshl_b32 s{sT1}, s{sT1}, 10\ns_and_b32 s{sT2}, s{sP}, 7\ns_lshl_b32 s{sT2}, s{sT2}, 7\ns_add_u32 s{sT1}, s{sT1}, s{sT2}\ns_add_u32 s{sT1}, s{sT1}, {H5}")
    a(f"s_lshl_b32 s{sT2}, s{sW}, 9\nv_lshlrev_b32 v49, 2, v2\nv_lshl_or_b32 v49, v3, 8, v49\nv_add_u32 v49, s{sT2}, v49")
    a("v_lshlrev_b32 v50, 4, v1\nv_lshlrev_b32 v51, 3, v2\nv_lshl_or_b32 v51, v3, 14, v51")
    a("s_waitcnt vmcnt(0) lgkmcnt(0)")
    stamp("s8poll")
    a("S8L:")
    a(f"buffer_load_dwordx4 v[36:39], v48, {R('ws')}, s{sT0} offen sc1\ns_waitcnt vmcnt(0)")
    for i in range(4): mfma(208 + 4 * i, 36, 64 + 4 * i, "0")
    check([37, 39], 52, "S8L", "S8OK")
    a("S8OK:")
    stamp("s8ok")
    for i in range(4): a(f"v_pk_add_f32 {vr(208+4*i,2)}, {vr(208+4*i,2)}, {vr(210+4*i,2)}")
    for i in range(4): a(f"v_add_f32 v{208+4*i}, v{208+4*i}, v{209+4*i}")
    a("s_mov_b32 exec_hi, 0")
    a(f"ds_write2_b32 v49, v208, v212 offset0:0 offset1:16\nds_write2_b32 v49, v216, v220 offset0:32 offset1:48")
    a("s_waitcnt lgkmcnt(0)\ns_barrier")
    a(f"s_cmp_lg_u32 s{sW}, 0\ns_cbranch_scc1 FIN")
    sum8(50, RED, 512, 64)
    a("v_cvt_pk_bf16_f32 v64, v64, v65\nv_cvt_pk_bf16_f32 v65, v66, v67")
    a(f"buffer_store_dwordx2 v[64:65], v51, {R('ws')}, s{sT1} offen sc1")
    a("FIN:")
    if stamps:
        exec_all()
        a("s_waitcnt vmcnt(0)\ns_memrealtime s[100:101]\ns_waitcnt lgkmcnt(0)")
        for k in range(11): a(f"v_writelane_b32 v36, s{80+2*k}, {k}")
        a(f"v_writelane_b32 v36, s{sIT}, 11")
        a(f"s_lshl_b32 s{sT0}, s2, 3\ns_add_u32 s{sT0}, s{sT0}, s{sW}\ns_lshl_b32 s{sT0}, s{sT0}, 6\ns_add_u32 s{sT0}, s{sT0}, {STAMP}")
        a("v_lshlrev_b32 v37, 2, v1\ns_mov_b64 exec, 0xffff")
        a(f"buffer_store_dword v36, v37, {R('ws')}, s{sT0} offen")
    a("s_waitcnt vmcnt(0)")
    if PROBE:
        if PROBE == "end": a("s_memrealtime s[82:83]")
        if PWG is not None: a(f"s_cmp_lg_u32 s2, {PWG}\ns_cbranch_scc1 END")
        a("s_waitcnt lgkmcnt(0)\ns_add_u32 s82, s82, 3000\nPRB:\ns_sleep 2\ns_memrealtime s[84:85]\ns_waitcnt lgkmcnt(0)\ns_sub_u32 s86, s84, s82\ns_cmp_lt_i32 s86, 0\ns_cbranch_scc1 PRB")
    a("END:\ns_endpgm")
    lines, pads = hazard.fix(a.lines)
    return wrap("\n".join(lines) + "\n", 256, 512, 160 * 1024)

if __name__ == "__main__":
    import sys
    open(sys.argv[1] if len(sys.argv) > 1 else "k.s", "w").write(gen())
```

```python
from asmlib import *
import hazard, struct

def f2u(x): return struct.unpack("<I", struct.pack("<f", x))[0]
LOG2E = 1.4426950408889634
H1, H3, H4B, H5, HM, H7, ML, H4 = 0, 0x10000, 0x20000, 0x30000, 0x38000, 0x50000, 0x40000, 0x100000
STAMP = 0x800000
QL, PB, MX, MLW, YL, HID, RED, KV = 0, 16384, 20480, 20992, 21504, 23552, 0, 32768
B2L, B3L = KV + 32768, KV + 65536
PA, MXA, NCLR = KV, KV + 8192, 48
SRD = dict(ws=4, ckv=8, wq=12, wuk=16, wuv=20, wo=24, w1=28, w2=32, wmod=36, x=40, c=44, b1=48, b2=52, out=56, dbg=60)
def R(n): return f"s[{SRD[n]}:{SRD[n]+3}]"
def vr(a, n): return f"v[{a}:{a+n-1}]" if n > 1 else f"v{a}"
sW, sX, sB, sP = 3, 64, 65, 66
sT0, sT1, sT2, sT3, sIT = 67, 68, 69, 70, 71
sCK, sKVW, sE0, sE1 = 72, 73, 74, 75
sH, sCQ, sB6 = 76, 77, 78
sSZW = 79
SPIN = 1 << 16
FULL = "row_mask:0xf bank_mask:0xf"

def gen(NPRE=4, stamps=False, NT='', NPS1=4, HRD=1, S8NW=1, EH3=1, CLRPOS=2, W2E=False, FULLST=True, FL3=True, FL4=True, ORD=1, THR=0, MB=2, NOKV=16, GATE='H3 ML', SLP=0, S1X=8, PROBE=None, PWG=None):
    a = Asm()
    global LAST_ORD, LAST_S1X; LAST_ORD = ORD; LAST_S1X = S1X
    if NPS1 is None: NPS1 = NPRE
    def nt(n): return ' nt' if n in NT.split() else ''
    def stamp(k):
        if PROBE and (k == PROBE or k == "start"): a("s_memrealtime s[82:83]")
        if stamps and k in stamps:
            i = stamps.index(k); a(f"s_memrealtime s[{80+2*i}:{81+2*i}]")
    def exec_set(lo, hi): a(f"s_mov_b32 exec_lo, {lo}\ns_mov_b32 exec_hi, {hi}")
    def exec_all(): a("s_mov_b64 exec, -1")
    def mfma(d, A, B, c=None): a(f"v_mfma_f32_16x16x32_bf16 {vr(d,4)}, {vr(A,4)}, {vr(B,4)}, {vr(d,4) if c is None else c}")
    def red_s(op, regs, tmps):
        for sw in ("v_permlane32_swap_b32", "v_permlane16_swap_b32"):
            for r, t in zip(regs, tmps): a(f"v_mov_b32 v{t}, v{r}")
            for r, t in zip(regs, tmps): a(f"{sw} v{r}, v{t}")
            for r, t in zip(regs, tmps): a(f"{op} v{r}, v{r}, v{t}")
    def red_dpp(op, regs, steps):
        for st in steps:
            for r in regs: a(f"{op}_dpp v{r}, v{r}, v{r} {st} {FULL}")
    R8 = ["quad_perm:[1,0,3,2]", "quad_perm:[2,3,0,1]", "row_half_mirror"]
    R16 = ["row_ror:8", "row_ror:4", "row_ror:2", "row_ror:1"]
    def check(dw, tmp, loop, out, emit=None, chk=None, glane=63):
        dw = list(dw)
        if len(dw) == 1: cur = dw.pop()
        else:
            cur = None
            while dw:
                if cur is None:
                    if len(dw) >= 3: a(f"v_max3_u32 v{tmp}, v{dw[0]}, v{dw[1]}, v{dw[2]}"); dw = dw[3:]
                    else: a(f"v_max_u32 v{tmp}, v{dw[0]}, v{dw[1]}"); dw = dw[2:]
                    cur = tmp
                elif len(dw) >= 2: a(f"v_max3_u32 v{tmp}, v{tmp}, v{dw[0]}, v{dw[1]}"); dw = dw[2:]
                else: a(f"v_max_u32 v{tmp}, v{tmp}, v{dw[0]}"); dw = dw[1:]
        a(f"v_cmp_eq_u32 vcc, -1, v{cur}")
        a(f"s_cbranch_vccz {out}")
        if emit and loop[:2] in GATE.split():
            t = loop[:2]
            def miss(j):
                c = chk[j]
                if len(c) == 2: a(f"v_max_u32 v{tmp}, v{c[0]}, v{c[1]}")
                a(f"v_cmp_eq_u32 vcc, -1, v{tmp if len(c) == 2 else c[0]}")
            exec_set(hex((1 << glane) & 0xffffffff), hex((1 << glane) >> 32))
            a(f"{t}G:")
            miss(len(chk) - 1)
            a(f"s_cbranch_vccz {t}R")
            if SLP: a(f"s_sleep {SLP}")
            emit(len(chk) - 1)
            a(f"s_add_u32 s{sIT}, s{sIT}, 1\ns_cmp_lt_u32 s{sIT}, {SPIN}\ns_waitcnt vmcnt(0)\ns_cbranch_scc1 {t}G\n{t}R:")
            for j in range(len(chk)):
                exec_all()
                miss(j)
                a("s_mov_b64 exec, vcc")
                emit(j)
            exec_all()
            a("s_waitcnt vmcnt(0)")
            loop = t + "W"
        a(f"s_add_u32 s{sIT}, s{sIT}, 1\ns_cmp_lt_u32 s{sIT}, {SPIN}\ns_cbranch_scc1 {loop}")
    def ckv_dma(k):
        q, g = k >> 2, k & 3
        if k >= NOKV: return
        a(f"s_add_u32 m0, s{sKVW}, {q*3840+g*1024}")
        a(f"buffer_load_dwordx4 v{12+g}, {R('ckv')}, s{sCK} offen offset:{q*256}{nt('ckv')} lds")

    def late_common():
        a("v_and_b32 v37, 9, v2\nv_and_b32 v38, 2, v2\nv_lshl_or_b32 v37, v38, 1, v37\nv_bfe_u32 v38, v2, 2, 1\nv_lshl_or_b32 v37, v38, 1, v37")
        a("v_xor_b32 v38, v37, v3\nv_lshlrev_b32 v38, 4, v38\nv_lshl_or_b32 v4, v2, 8, v38")
        for t in range(1, 4): a(f"v_xor_b32 v{4+t}, {t<<6}, v4")
        for t in range(4): a(f"v_add_u32 v{8+t}, s{sKVW}, v{4+t}")
        a(f"s_lshl_b32 s{sT0}, s{sW}, 1\nv_lshrrev_b32 v38, 1, v3\nv_or_b32 v38, s{sT0}, v38\nv_xor_b32 v38, v38, v37")
        a("v_lshlrev_b32 v38, 4, v38\nv_lshl_or_b32 v38, v2, 8, v38\nv_and_b32 v39, 1, v3\nv_lshl_or_b32 v61, v39, 3, v38")
        masks()
    def masks():
        a("v_and_b32 v38, 1, v2\nv_lshlrev_b32 v38, 4, v38\nv_mov_b32 v39, 0xffff\nv_lshlrev_b32 v39, v38, v39\nv_bfe_u32 v38, v2, 1, 2")
        for r in range(4):
            a(f"v_cmp_eq_u32 vcc, {r}, v38\nv_cndmask_b32 v{32+r}, 0, v39, vcc")
    def c_addr(dst):
        a(f"v_lshrrev_b32 v{dst}, 3, v2\nv_lshlrev_b32 v{dst}, 10, v{dst}\nv_lshl_or_b32 v{dst}, v3, 3, v{dst}")
    def silu_onehot(cr, A, t):
        a(f"v_lshlrev_b32 v{t}, 16, v{cr}\nv_and_b32 v{t+1}, 0xffff0000, v{cr}\nv_lshlrev_b32 v{t+2}, 16, v{cr+1}\nv_and_b32 v{t+3}, 0xffff0000, v{cr+1}")
        for i in range(4): a(f"v_mul_f32 v{t+4+i}, {hex(f2u(-LOG2E))}, v{t+i}")
        for i in range(4): a(f"v_exp_f32 v{t+4+i}, v{t+4+i}")
        for i in range(4): a(f"v_add_f32 v{t+4+i}, 1.0, v{t+4+i}")
        for i in range(4): a(f"v_rcp_f32 v{t+4+i}, v{t+4+i}")
        for i in range(4): a(f"v_mul_f32 v{t+i}, v{t+i}, v{t+4+i}")
        for i in range(4): a(f"v_cvt_pk_bf16_f32 v{t+i}, v{t+i}, v{t+i}")
        for i in range(4):
            for r in range(4): a(f"v_and_b32 v{A+4*i+r}, v{t+i}, v{32+r}")
    def mod_reduce(W, A):
        for i in range(4): mfma(208, A + 4 * i, W + 4 * i, "0" if i == 0 else None)
        a(f"s_lshl_b32 s{sT0}, s{sW}, 10\nv_lshlrev_b32 v44, 4, v1\nv_add_u32 v45, s{sT0}, v44")
        a(f"ds_write_b128 v45, v[208:211] offset:{RED}\ns_waitcnt lgkmcnt(0)\ns_barrier")
    def sum8(addr, base, stride, buf, n=8):
        for k in range(n): a(f"ds_read_b128 {vr(buf+4*k,4)}, v{addr} offset:{base+k*stride}")
        for k in range(0, n, 2):
            a(f"s_waitcnt lgkmcnt({n-2-k})")
            for hlf in (0, 2): a(f"v_pk_add_f32 {vr(buf+4*k+hlf,2)}, {vr(buf+4*k+hlf,2)}, {vr(buf+4*k+4+hlf,2)}")
            if k:
                for hlf in (0, 2): a(f"v_pk_add_f32 {vr(buf+hlf,2)}, {vr(buf+hlf,2)}, {vr(buf+4*k+hlf,2)}")

    def w1_dma(half):
        a(f"s_and_b32 s{sT1}, s{sP}, 1")
        if half: a(f"s_xor_b32 s{sT1}, s{sT1}, 1")
        a(f"s_lshl_b32 s{sT0}, s{sW}, 1\ns_add_u32 s{sT0}, s{sT0}, s{sT1}\ns_mul_i32 s{sT0}, s{sT0}, {32*3584}")
        a(f"s_lshl_b32 s{sT2}, s{sX}, 3\ns_add_u32 s{sT2}, s{sT2}, s{sP}\ns_lshl_b32 s{sT2}, s{sT2}, 6\ns_add_u32 s{sT0}, s{sT0}, s{sT2}")
        a(f"s_lshl_b32 s{sT1}, s{sT1}, 11\ns_add_u32 m0, s{sKVW}, s{sT1}")
        a(f"buffer_load_dwordx4 v56, {R('w1')}, s{sT0} offen{nt('w1')} lds")
        a(f"s_add_u32 m0, m0, 1024\ns_add_u32 s{sT0}, s{sT0}, {16*3584}")
        a(f"buffer_load_dwordx4 v56, {R('w1')}, s{sT0} offen{nt('w1')} lds")
    def srd(*ns):
        for n in ns: a(f"s_mov_b32 s{SRD[n]+2}, {SIZES[n]}\ns_mov_b32 s{SRD[n]+3}, 0x00020000")
    def cnt_load():
        a(f"s_cmp_eq_u32 s{sW}, 7\ns_cselect_b64 exec, 1, 0\nbuffer_load_dword v63, v62, {R('dbg')}, 0 offen offset:128 sc1")
        exec_all()
    def cnt_check(tag):
        a(f"s_cmp_lg_u32 s{sW}, 7\ns_cbranch_scc1 {tag}_OK\n{tag}_CK:")
        a(f"v_readfirstlane_b32 s{sE0}, v63")
        a(f"s_cmp_lg_u32 s{sE0}, 0\ns_cbranch_scc1 {tag}_OK")
        cnt_load()
        a(f"s_add_u32 s{sIT}, s{sIT}, 1\ns_cmp_lt_u32 s{sIT}, {SPIN}\ns_waitcnt vmcnt(0)\ns_cbranch_scc1 {tag}_CK")
        a(f"{tag}_OK:")
    def pub_line(r, sh, tag):
        a(f"ds_write_b64 v252, {vr(r,2)} offset:{MX}")
        exec_all()
        a(f"v_lshlrev_b32 v254, {sh}, v3\nv_lshl_or_b32 v254, v2, 4, v254")
        a(f"s_cmp_lg_u32 s{sW}, 0\ns_waitcnt lgkmcnt(0)\ns_barrier\ns_cbranch_scc1 {tag}_E")
        a(f"s_mov_b32 exec_hi, 0\nds_read_b128 {vr(r,4)}, v253 offset:{MX}\ns_waitcnt lgkmcnt(0)")
        a(f"buffer_store_dwordx4 {vr(r,4)}, v254, {R('ws')}, s{sT0} offen sc1\n{tag}_E:")
    a("s_cmp_ge_u32 s2, 256\ns_cbranch_scc1 END")
    if stamps:
        for i in range(1, 10): a(f"s_mov_b32 s{80+2*i}, 0")
    stamp("start")
    for n in ["wmod", "wq", "ckv", "ws", "c", "wuk", "x", "dbg", "wuv", "wo", "w1", "w2", "b1", "b2", "out"]:
        a(f"s_load_dwordx2 s[{SRD[n]}:{SRD[n]+1}], s[0:1], {KOFF[n]}")
    a("v_lshrrev_b32 v3, 6, v0\nv_and_b32 v1, 63, v0\nv_and_b32 v2, 15, v0")
    a(f"v_readfirstlane_b32 s{sW}, v3")
    a("v_lshrrev_b32 v3, 4, v1")
    a(f"s_and_b32 s{sX}, s2, 7\ns_lshr_b32 s{sP}, s2, 4\ns_mov_b32 s{sIT}, 0")
    srd("ws", "dbg")
    a("v_and_b32 v36, 2, v3\nv_add_u32 v36, v36, v3\nv_xor_b32 v36, v36, v2\nv_lshlrev_b32 v36, 4, v36")
    a("v_mov_b32 v40, -1\nv_mov_b32 v41, -1\nv_mov_b32 v42, -1\nv_mov_b32 v43, -1\nv_mov_b32 v62, 0")
    a(f"s_lshl_b32 s{sT1}, s{sW}, 14\ns_add_u32 s{sKVW}, s{sT1}, {KV}")
    if ORD == 0: a("s_bitcmp1_b32 s2, 3\ns_cbranch_scc1 BPATH")
    else:
        a(f"s_lshr_b32 s{sT0}, s2, 3\ns_sub_u32 s{sP}, s{sT0}, {ORD*4}\ns_cmp_lt_u32 s{sP}, 16\ns_cbranch_scc1 BPATH\ns_and_b32 s{sP}, s{sT0}, 15")
    srd("ckv")
    a(f"s_lshl_b32 s{sT0}, s{sX}, 4\ns_add_u32 s{sB}, s{sT0}, s{sP}\ns_lshl_b32 s{sCK}, s{sB}, 17\ns_add_u32 s{sCK}, s{sCK}, s{sT1}")
    a("v_lshl_add_u32 v12, v3, 10, v36")
    for g in range(1, 4):
        a(f"v_xor_b32 v{12+g}, {((g&1)*32)|((g>>1)*128)|(g*4096)}, v12")
    stamp("prol")
    sX1, sP1 = sH, sCQ
    if S1X == 8: a(f"s_mov_b32 s{sX1}, s{sX}\ns_mov_b32 s{sP1}, s{sP}\ns_cmp_ge_u32 s{sP}, 4\ns_cbranch_scc1 A_PLAIN")
    else: a(f"s_and_b32 s{sX1}, s{sP}, 4\ns_or_b32 s{sX1}, s{sX1}, s{sX}\ns_and_b32 s{sP1}, s{sP}, 3\ns_lshl_b32 s{sT0}, s{sX}, 1\ns_or_b32 s{sT0}, s{sT0}, s{sP}\ns_cmp_ge_u32 s{sT0}, 8\ns_cbranch_scc1 A_PLAIN")
    srd("c", "wmod", "x")
    c_addr(46)
    a("v_and_b32 v47, 7, v2\nv_lshlrev_b32 v47, 4, v47\nv_lshrrev_b32 v48, 3, v2\nv_lshl_or_b32 v48, v48, 10, v47")
    a("v_mul_u32_u24 v49, 24576, v3\nv_add_u32 v48, v48, v49")
    a("v_and_b32 v49, 1, v3\nv_lshl_or_b32 v47, v49, 3, v47\nv_lshrrev_b32 v49, 1, v3")
    a("v_lshl_or_b32 v50, v49, 12, v47\nv_lshl_or_b32 v51, v49, 10, v47\nv_lshlrev_b32 v52, 5, v1")
    a(f"s_lshl_b32 s{sT0}, s{sP1}, 3\ns_add_u32 s{sT0}, s{sT0}, s{sW}\ns_lshl_b32 s{sT1}, s{sT0}, 5")
    a(f"s_mul_i32 s{sT0}, s{sT0}, {16*6144}\ns_lshl_b32 s{sT2}, s{sX1}, 7\ns_add_u32 s{sT0}, s{sT0}, s{sT2}")
    a(f"s_lshl_b32 s{sT3}, s{sP1}, 10\ns_add_u32 s{sT3}, s{sT3}, s{sT2}")
    a(f"s_lshl_b32 s{sB6}, s{sP1}, 3\ns_add_u32 s{sB6}, s{sB6}, s{sX1}\ns_lshl_b32 s{sB6}, s{sB6}, 13\ns_add_u32 s{sB6}, s{sB6}, {H3}\nv_lshlrev_b32 v44, 4, v0")
    a("s_waitcnt lgkmcnt(0)")
    a(f"buffer_load_dwordx2 v[36:37], v46, {R('c')}, s{sT1} offen")
    a(f"buffer_store_dwordx4 v[40:43], v44, {R('ws')}, s{sB6} offen sc1")
    a(f"s_cmp_lg_u32 s{sW}, 0\ns_cbranch_scc1 S1_W")
    exec_set("0x00ff00ff", "0x00ff00ff")
    a(f"buffer_store_dwordx2 v[40:41], v50, {R('ws')}, s{sT3} offen sc1")
    exec_all()
    a(f"buffer_load_dwordx4 v[80:83], v52, {R('x')}, 0 offen\nbuffer_load_dwordx4 v[84:87], v52, {R('x')}, 0 offen offset:16")
    a(f"buffer_load_dwordx2 v[88:89], v51, {R('x')}, s{sT2} offen")
    a("S1_W:")
    for i in range(4):
        a(f"buffer_load_dwordx4 {vr(64+4*i,4)}, v48, {R('wmod')}, s{sT0} offen nt")
        if i < 3: a(f"s_add_u32 s{sT0}, s{sT0}, 6144")
    masks()
    a("v_mov_b32 v53, 1")
    stamp("s1iss")
    a("s_waitcnt vmcnt(5)")
    silu_onehot(36, 128, 96)
    a(f"s_cmp_lg_u32 s{sW}, 1\ns_waitcnt vmcnt(4)\ns_barrier")
    stamp("s1c")
    a(f"s_cbranch_scc1 S1_NA\ns_mov_b64 exec, 1")
    a(f"buffer_atomic_add v53, v62, {R('dbg')}, 0 offen sc0 sc1")
    exec_all()
    a("s_waitcnt vmcnt(1)\nS1_NA:")
    for k in range(NPS1): ckv_dma(k)
    a(f"s_cmp_lg_u32 s{sW}, 0\ns_cbranch_scc1 S1_NOLN")
    for i in range(8):
        a(f"v_lshlrev_b32 v{96+2*i}, 16, v{80+i}\nv_and_b32 v{97+2*i}, 0xffff0000, v{80+i}")
    a("v_pk_add_f32 v[112:113], v[96:97], v[98:99]")
    for i in range(2, 8): a(f"v_pk_add_f32 v[112:113], v[112:113], {vr(96+2*i,2)}")
    a("v_add_f32 v112, v112, v113")
    def red32(r, t):
        red_dpp("v_add_f32", [r], R16)
        a(f"v_mov_b32 v{t}, v{r}\nv_permlane16_swap_b32 v{r}, v{t}\nv_add_f32 v{r}, v{r}, v{t}")
    red32(112, 113)
    a(f"v_mul_f32 v112, {hex(f2u(1/512))}, v112")
    for i in range(16): a(f"v_sub_f32 v{96+i}, v{96+i}, v112")
    a("v_mul_f32 v114, v96, v96")
    for i in range(1, 16): a(f"v_fmac_f32 v114, v{96+i}, v{96+i}")
    red32(114, 113)
    a(f"v_mov_b32 v113, {hex(f2u(1e-5))}\nv_fmac_f32 v113, {hex(f2u(1/512))}, v114\nv_rsq_f32 v113, v113")
    a("v_lshlrev_b32 v116, 16, v88\nv_and_b32 v117, 0xffff0000, v88\nv_lshlrev_b32 v118, 16, v89\nv_and_b32 v119, 0xffff0000, v89")
    for i in range(4): a(f"v_sub_f32 v{116+i}, v{116+i}, v112\nv_mul_f32 v{116+i}, v{116+i}, v113")
    a(f"s_cmp_eq_u32 s{sP1}, 0\ns_cselect_b32 s{sT0}, 1.0, 0\nv_mov_b32 v120, s{sT0}")
    a("S1_NOLN:")
    a(f"s_cmp_eq_u32 s{sW}, 1\ns_cbranch_scc1 S1_W1\ns_waitcnt vmcnt({NPS1})\nS1_W1:")
    stamp("s1w")
    mod_reduce(64, 128)
    stamp("s1bar")
    a(f"s_cmp_lg_u32 s{sW}, 1\ns_cbranch_scc1 S1_NF\ns_waitcnt vmcnt({NPS1})\nv_readfirstlane_b32 s{sE0}, v53")
    a(f"s_cmp_lg_u32 s{sE0}, 31\ns_cbranch_scc1 S1_DONE\ns_mov_b64 exec, 1\nbuffer_store_dword v53, v62, {R('dbg')}, 0 offen offset:128 sc1")
    exec_all()
    a(f"S1_NF:\ns_cmp_lg_u32 s{sW}, 0\ns_cbranch_scc1 S1_DONE")
    sum8(44, RED, 1024, 64)
    for i in range(4): a(f"v_add_f32_dpp v{68+i}, v{64+i}, v120 row_ror:8 {FULL}")
    for i in range(4): a(f"v_fmac_f32 v{64+i}, v{68+i}, v{116+i}")
    a("v_cvt_pk_bf16_f32 v64, v64, v65\nv_cvt_pk_bf16_f32 v65, v66, v67")
    exec_set("0x00ff00ff", "0x00ff00ff")
    a(f"buffer_store_dwordx2 v[64:65], v50, {R('ws')}, s{sT3} offen sc1")
    exec_all()
    a("S1_DONE:")
    stamp("s1pub")
    a("s_barrier")
    for k in range(NPS1, NPRE): ckv_dma(k)
    a("s_branch A2")
    a("A_PLAIN:")
    a("s_waitcnt lgkmcnt(0)")
    for k in range(NPRE): ckv_dma(k)
    a("A2:")
    for k in range(NPRE, 16):
        if k < THR: a(f"s_waitcnt vmcnt({NPRE-1})")
        if EH3 and k == 12: cnt_load()
        ckv_dma(k)
    if not EH3: cnt_load()
    stamp("aiss")
    late_common()
    srd("w1", "w2", "b1", "b2", "x", "out")
    a("v_lshrrev_b32 v47, 2, v2\nv_and_b32 v48, 3, v2\nv_and_b32 v49, 1, v3")
    a("v_and_b32 v50, 2, v47\nv_add_u32 v50, v50, v47\nv_xor_b32 v50, v50, v48")
    a(f"s_and_b32 s{sT1}, s{sW}, 1\nv_xor_b32 v51, s{sT1}, v49\nv_lshl_or_b32 v50, v51, 3, v50\nv_lshlrev_b32 v50, 4, v50")
    a("v_and_b32 v51, 1, v48\nv_lshl_or_b32 v50, v51, 3, v50")
    a("v_lshl_or_b32 v51, v49, 3, v47\nv_lshl_or_b32 v50, v51, 8, v50\nv_lshrrev_b32 v51, 1, v3\nv_lshl_or_b32 v50, v51, 14, v50")
    a(f"s_lshr_b32 s{sT1}, s{sW}, 1\ns_lshl_b32 s{sT1}, s{sT1}, 12\ns_add_u32 s{sT1}, s{sT1}, {KV}\nv_add_u32 v16, s{sT1}, v50")
    for i in range(4):
        for hh in range(2):
            if i or hh: a(f"v_xor_b32 v{16+2*i+hh}, {(hh*(1024|32))|((i>>1)*64)|((i&1)*8)}, v16")
    for k in range(8): a(f"v_add_u32 v{24+k}, 0x10000, v{16+k}")
    a("v_lshrrev_b32 v46, 3, v1\nv_and_b32 v47, 2, v46\nv_and_b32 v54, 7, v1\nv_xor_b32 v54, v54, v47\nv_lshlrev_b32 v54, 4, v54\nv_lshl_or_b32 v54, v46, 10, v54\nv_xor_b32 v55, 64, v54")
    a("v_lshrrev_b32 v46, 2, v1\nv_and_b32 v47, 2, v3\nv_and_b32 v56, 3, v1\nv_xor_b32 v56, v56, v47\nv_lshlrev_b32 v56, 4, v56\nv_mul_u32_u24 v46, 3584, v46\nv_add_u32 v56, v56, v46")
    a(f"s_and_b32 s{sT1}, s{sW}, 1\ns_lshl_b32 s{sT1}, s{sT1}, 1\ns_and_b32 s{sT2}, s{sW}, 2\ns_lshl_b32 s{sT2}, s{sT2}, 2\ns_or_b32 s{sT1}, s{sT1}, s{sT2}")
    a(f"v_xor_b32 v45, s{sT1}, v2\nv_lshlrev_b32 v45, 4, v45\nv_lshl_or_b32 v45, v3, 12, v45")
    a(f"s_and_b32 s{sT1}, s{sW}, 3\ns_lshl_b32 s{sT1}, s{sT1}, 10\ns_and_b32 s{sT2}, s{sW}, 4\ns_lshl_b32 s{sT2}, s{sT2}, 12\ns_or_b32 s{sT1}, s{sT1}, s{sT2}\nv_or_b32 v45, s{sT1}, v45")
    a("v_xor_b32 v46, 0x110, v45\nv_xor_b32 v47, 0x240, v45\nv_xor_b32 v48, 0x350, v45\nv_lshlrev_b32 v44, 4, v1")
    a(f"s_lshr_b32 s{sT0}, s{sX}, 2\ns_lshl_b32 s{sT0}, s{sT0}, 3\ns_add_u32 s{sT0}, s{sT0}, s{sW}\ns_lshl_b32 s{sT0}, s{sT0}, 12\ns_add_u32 s{sT0}, s{sT0}, {H3}")
    a("s_waitcnt vmcnt(8)")
    def h3_loads(js=range(4)):
        for j in js: a(f"buffer_load_dwordx4 {vr(192+4*j,4)}, v44, {R('ws')}, s{sT0} offen offset:{j*1024} sc1")
    for t in range(8): a(f"ds_read_b128 {vr(64+4*t,4)}, v{8+(t&3)} offset:{(t>>2)*4096}")
    a(f"v_and_b32 v49, 1, v3\nv_lshlrev_b32 v49, 9, v49\nv_lshl_or_b32 v49, v2, 5, v49\ns_lshl_b32 s{sT2}, s{sW}, 2\nv_add_u32 v59, s{sT2}, v49")
    if FULLST: a("v_and_b32 v50, 7, v2\nv_lshlrev_b32 v50, 10, v50\nv_lshl_or_b32 v50, v3, 4, v50\nv_lshrrev_b32 v51, 3, v2\nv_lshl_or_b32 v50, v51, 6, v50\nv_lshlrev_b32 v51, 3, v2")
    else: a("v_lshlrev_b32 v50, 10, v2\nv_lshl_or_b32 v50, v3, 4, v50\nv_lshlrev_b32 v51, 3, v2")
    for i in range(4): a(f"v_mov_b32 v{248+i}, 0x3f803f80")
    a(f"s_and_b32 s{sT1}, s{sW}, 1\ns_lshl_b32 s{sT1}, s{sT1}, 7\ns_add_u32 s{sT2}, s{sT1}, s{sB}\ns_lshl_b32 s{sT3}, s{sT2}, 7\ns_add_u32 s{sT3}, s{sT3}, {ML}")
    a(f"s_lshl_b32 s{sT2}, s{sT2}, 14\ns_lshl_b32 s{sCQ}, s{sW}, 7\ns_add_u32 s{sT2}, s{sT2}, s{sCQ}\ns_xor_b32 s{sCQ}, s{sT2}, {128<<14}\ns_add_u32 s{sT2}, s{sT2}, {H4}\ns_add_u32 s{sCQ}, s{sCQ}, {H4}")
    a(f"s_lshl_b32 s{sH}, s{sX}, 3\ns_cmp_ge_u32 s{sP}, 8\ns_cselect_b32 s{sH}, s{sH}, 64\ns_and_b32 s{sP}, s{sP}, 7\ns_add_u32 s{sH}, s{sH}, s{sP}")
    a(f"s_lshl_b32 s{sKVW}, s{sW}, 12\ns_add_u32 s{sKVW}, s{sKVW}, {B2L}")
    for q in (2, 3):
        a(f"s_waitcnt vmcnt({4 if EH3 else 12-4*q})")
        for t in range(4 * q, 4 * q + 4): a(f"ds_read_b128 {vr(64+4*t,4)}, v{8+(t&3)} offset:{(t>>2)*4096}")
        if EH3 and q == 2:
            cnt_check("AC")
            a("s_barrier")
            h3_loads()
    stamp("kvok")
    if not EH3: cnt_check("AC")
    a("s_barrier")
    stamp("acnt")
    def h4_clear():
        for so in (sT2, sCQ):
            a(f"buffer_store_dwordx4 v[40:43], v50, {R('ws')}, s{so} offen sc1\ns_add_u32 s{sE0}, s{so}, 8192")
            a(f"buffer_store_dwordx4 v[40:43], v50, {R('ws')}, s{sE0} offen sc1")
    def h7_clear():
        a(f"s_lshl_b32 s{sE0}, s{sB}, 10\ns_add_u32 s{sE0}, s{sE0}, {H7}\ns_lshl_b32 s{sE1}, s{sW}, 7\ns_add_u32 s{sE0}, s{sE0}, s{sE1}\ns_mov_b64 exec, 0xff")
        a(f"buffer_store_dwordx4 v[40:43], v44, {R('ws')}, s{sE0} offen sc1")
        exec_all()
    if not HRD: h4_clear(); h7_clear()
    if not EH3: h3_loads()
    if HRD: h4_clear(); h7_clear()
    for u in range(4):
        for i in range(4):
            for hh in range(2):
                a(f"ds_read_b64_tr_b16 {vr(128+16*u+4*i+2*hh,2)}, v{16+8*(u>>1)+2*i+hh} offset:{(u&1)*32768}")
    a(f"s_lshl_b32 s{sT1}, s{sT1}, 5")
    for t in range(4): a(f"v_or_b32 v{8+t}, s{sT1}, v{4+t}\nv_xor_b32 v{12+t}, 0x1000, v{8+t}")
    a(f"s_waitcnt vmcnt({5 if HRD else 0})\ns_branch H3W\nH3L:")
    h3_loads()
    a("s_waitcnt vmcnt(0)\nH3W:")
    check([195 + 4 * i for i in range(4)], 52, "H3L", "H3OK", lambda j: h3_loads([j]), [[195 + 4 * i] for i in range(4)])
    a("H3OK:")
    stamp("h3ok")
    for j in range(4): a(f"ds_write_b128 v{45+j}, {vr(192+4*j,4)} offset:{QL}")
    a("s_waitcnt lgkmcnt(0)\ns_barrier")
    stamp("qlbar")
    NB = 12
    def qrd(k): a(f"ds_read_b128 {vr(192+4*(k%NB),4)}, v{4+((k>>1)&3)} offset:{QL+(k&1)*16384+(k>>3)*4096}")
    for k in range(NB): qrd(k)
    def w2_dma():
        a(f"s_lshl_b32 s{sT0}, s{sH}, 15\ns_lshl_b32 s{sT1}, s{sW}, 7\ns_add_u32 s{sT0}, s{sT0}, s{sT1}")
        for g in range(4):
            a(f"s_add_u32 m0, s{sKVW}, {32768+g*1024}")
            if g: a(f"s_add_u32 s{sT0}, s{sT0}, 8192")
            a(f"buffer_load_dwordx4 v{54+(g&1)}, {R('w2')}, s{sT0} offen nt lds")
    if W2E:
        a(f"s_cmp_ge_u32 s{sH}, 56\ns_cbranch_scc1 NOW2")
        w2_dma()
        a("NOW2:")
    for k in range(32):
        a(f"s_waitcnt lgkmcnt({min(NB-1 if k == 0 else NB-2, 31-k)})")
        mfma(240 + 4 * (k & 1), 64 + 4 * (k >> 1), 192 + 4 * (k % NB), "0" if k < 2 else None)
        if k >= 1 and k - 1 + NB < 32: qrd(k - 1 + NB)
    a("v_max3_f32 v52, v240, v241, v242\nv_max_f32 v52, v52, v243\nv_max3_f32 v53, v244, v245, v246\nv_max_f32 v53, v53, v247")
    a("v_permlane16_swap_b32 v52, v53\nv_max_f32 v52, v52, v53\nv_mov_b32 v53, v52\nv_permlane32_swap_b32 v52, v53\nv_max_f32 v52, v52, v53")
    a(f"s_mov_b32 exec_hi, 0\nds_write_b32 v59, v52 offset:{MXA}")
    exec_all()
    a("s_waitcnt lgkmcnt(0)\ns_barrier")
    stamp("mxbar")
    a(f"ds_read_b128 v[36:39], v49 offset:{MXA}\nds_read_b128 v[40:43], v49 offset:{MXA+16}")
    a(f"s_bitcmp1_b32 s{sW}, 0\ns_cselect_b64 vcc, -1, 0")
    a("s_waitcnt lgkmcnt(1)\nv_max3_f32 v52, v36, v37, v38\ns_waitcnt lgkmcnt(0)\nv_max3_f32 v53, v39, v40, v41\nv_max3_f32 v52, v52, v42, v43\nv_max_f32 v52, v52, v53")
    a("v_mov_b32 v53, v52\nv_permlane16_swap_b32 v52, v53")
    for i in range(8): a(f"v_sub_f32 v{240+i}, v{240+i}, v{52+(i>>2)}")
    for i in range(8): a(f"v_exp_f32 v{240+i}, v{240+i}")
    for ht in range(2):
        a(f"v_cvt_pk_bf16_f32 v{240+4*ht}, v{240+4*ht}, v{241+4*ht}\nv_cvt_pk_bf16_f32 v{241+4*ht}, v{242+4*ht}, v{243+4*ht}")
        a(f"ds_write_b64 v61, {vr(240+4*ht,2)} offset:{PA+ht*4096}")
    a("v_cndmask_b32 v52, v52, v53, vcc")
    a("s_waitcnt vmcnt(0) lgkmcnt(0)\ns_barrier")
    stamp("pbar")
    for k in range(8): a(f"ds_read_b128 {vr(192+4*k,4)}, v{8+k} offset:{PA}")
    a(f"s_cmp_ge_u32 s{sW}, 2\ns_cbranch_scc1 NOL")
    for u in range(4):
        a(f"s_waitcnt lgkmcnt({7-u})")
        mfma(96, 248, 192 + 4 * u, "0" if u == 0 else None)
    a("NOL:")
    def ostore(j):
        o, pk = 64 + 16 * j, 100 + 8 * j
        for i in range(4): a(f"v_cvt_pk_bf16_f32 v{pk+2*i}, v{o+4*i}, v{o+1+4*i}\nv_cvt_pk_bf16_f32 v{pk+1+2*i}, v{o+2+4*i}, v{o+3+4*i}")
        so = sCQ if j else sT2
        if FULLST:
            for r in range(4): a(f"v_mov_b32 v{116+r}, v{pk+r}")
            for r in range(4): a(f"v_mov_b32_dpp v{pk+r}, v{pk+4+r} row_ror:8 row_mask:0xf bank_mask:0xc")
            a(f"buffer_store_dwordx4 {vr(pk,4)}, v50, {R('ws')}, s{so} offen sc1")
            for r in range(4): a(f"v_mov_b32_dpp v{pk+4+r}, v{116+r} row_ror:8 row_mask:0xf bank_mask:0x3")
            a(f"s_add_u32 s{so}, s{so}, 8192")
            a(f"buffer_store_dwordx4 {vr(pk+4,4)}, v50, {R('ws')}, s{so} offen sc1")
        else:
            for k in range(2): a(f"buffer_store_dwordx4 {vr(pk+4*k,4)}, v50, {R('ws')}, s{so} offen offset:{k*64} sc1")
    for j in range(2):
        for u in range(4):
            a(f"s_waitcnt lgkmcnt({7-4*j-u})")
            for i in range(4): mfma(64 + 16 * j + 4 * i, 128 + 16 * u + 4 * i, 192 + 16 * j + 4 * u, "0" if u == 0 else None)
            if j == 0 and u == 0:
                a(f"v_mov_b32 v53, v96\ns_cmp_lt_u32 s{sW}, 2\ns_cselect_b64 exec, 0xffff, 0")
                a(f"buffer_store_dwordx2 v[52:53], v51, {R('ws')}, s{sT3} offen sc1")
                exec_all()
            if j == 1 and u == 0: ostore(0)
    ostore(1)
    stamp("h4st")
    a(f"s_cmp_ge_u32 s{sH}, 56\ns_cbranch_scc1 FIN")
    if MB == 2: a("s_waitcnt vmcnt(0)")
    if MB: a("s_barrier")
    w1_dma(0)
    if not W2E: w2_dma()
    w1_dma(1)
    a("v_lshrrev_b32 v47, 2, v2\nv_and_b32 v48, 2, v47\nv_and_b32 v49, 1, v3\nv_lshl_or_b32 v48, v49, 2, v48\nv_bfe_u32 v49, v2, 1, 1\nv_or_b32 v48, v48, v49\nv_lshlrev_b32 v48, 4, v48")
    a(f"v_and_b32 v49, 1, v2\nv_lshl_or_b32 v48, v49, 3, v48\nv_lshl_add_u32 v50, v3, 3, v47\nv_lshl_or_b32 v44, v50, 7, v48\nv_add_u32 v44, s{sKVW}, v44")
    for i in range(1, 4): a(f"v_xor_b32 v{44+i}, {i<<5}, v44")
    a("v_and_b32 v49, 1, v3\nv_lshlrev_b32 v60, 4, v2\nv_lshl_or_b32 v60, v49, 3, v60\nv_lshrrev_b32 v49, 1, v3\nv_lshl_or_b32 v60, v49, 8, v60")
    a(f"v_and_b32 v49, 31, v1\nv_lshlrev_b32 v49, 1, v49\ns_lshl_b32 s{sT0}, s{sH}, 6\ns_and_b32 s{sB6}, s{sW}, 1\ns_lshl_b32 s{sT1}, s{sB6}, 10")
    a(f"s_bfe_u32 s{sCQ}, s{sH}, 0x10003\ns_lshl_b32 s{sT2}, s{sCQ}, 9")
    a(f"buffer_load_ushort v40, v49, {R('b1')}, s{sT0} offen")
    a(f"buffer_load_dwordx2 v[36:37], v60, {R('x')}, s{sT1} offen\nbuffer_load_dwordx2 v[38:39], v60, {R('x')}, s{sT1} offen offset:512")
    a(f"buffer_load_dwordx2 v[42:43], v60, {R('b2')}, s{sT2} offen")
    a("v_lshrrev_b32 v50, 2, v2\nv_lshl_add_u32 v50, v3, 3, v50\nv_and_b32 v48, 3, v2\nv_lshlrev_b32 v48, 3, v48\nv_and_b32 v49, 1, v3\nv_lshl_or_b32 v48, v49, 5, v48")
    a(f"v_lshl_or_b32 v48, v50, 6, v48\nv_add_u32 v48, s{sKVW}, v48\nv_xor_b32 v49, 32, v48")
    a(f"v_and_b32 v41, 1, v2\nv_lshlrev_b32 v50, 10, v41\nv_lshl_or_b32 v50, v3, 4, v50\ns_lshl_b32 s{sT0}, s{sW}, 7\nv_add_u32 v50, s{sT0}, v50")
    a(f"v_bfe_u32 v51, v2, 1, 1\nv_lshlrev_b32 v51, 6, v51\nv_lshl_or_b32 v51, v41, 7, v51\nv_lshl_or_b32 v51, v3, 4, v51\ns_lshl_b32 s{sT1}, s{sW}, 8\nv_add_u32 v51, s{sT1}, v51")
    a(f"v_lshlrev_b32 v52, 2, v1\nv_lshl_add_u32 v53, v1, 1, s{sT0}\nv_lshlrev_b32 v57, 6, v41\nv_lshl_or_b32 v57, v3, 4, v57\nv_add_u32 v57, s{sT0}, v57")
    a("v_mul_u32_u24 v58, 57344, v41\nv_lshrrev_b32 v41, 1, v2\nv_lshl_add_u32 v58, v41, 5, v58\nv_lshl_add_u32 v58, v3, 3, v58")
    a("v_lshlrev_b32 v59, 4, v2\nv_lshl_or_b32 v59, v3, 10, v59")
    for i in range(32): a(f"v_mov_b32 v{192+i}, 0")
    a("v_cmp_gt_u32 vcc, 8, v2")
    for r in range(4): a(f"v_and_b32 v{224+r}, 0x3f803f80, v{32+r}")
    for r in range(4): a(f"v_cndmask_b32 v{228+r}, 0, v{224+r}, vcc\nv_xor_b32 v{232+r}, v{228+r}, v{224+r}")
    a("s_waitcnt vmcnt(0)")
    for tau in range(2):
        for ft in range(2):
            for hh in range(2): a(f"ds_read_b64_tr_b16 {vr(64+8*tau+4*ft+2*hh,2)}, v{48+ft} offset:{tau*2048+hh*256}")
    for i in range(4):
        for hh in range(2): a(f"ds_read_b64_tr_b16 {vr(80+4*i+2*hh,2)}, v{44+i} offset:{32768+hh*512}")
    a(f"s_cmp_ge_u32 s{sW}, 2\ns_cbranch_scc1 MLP_Y")
    a(f"s_lshl_b32 s{sT1}, s{sW}, 12\ns_add_u32 s{sT1}, s{sT1}, {HM}")
    a("HML:")
    for k in range(4):
        a(f"s_add_u32 s{sT0}, s{sT1}, {k*8192}")
        for be in range(4): a(f"buffer_load_dwordx4 {vr(128+16*k+4*be,4)}, v59, {R('ws')}, s{sT0} offen offset:{be*256} sc1")
    a("s_waitcnt vmcnt(0)")
    check([129 + 2 * i for i in range(32)], 41, "HML", "HMOK")
    a("HMOK:")
    stamp("hmok")
    for k in range(4):
        for be in range(4): mfma(96 + 8 * k + 4 * (be >> 1), 228 + 4 * (be & 1), 128 + 16 * k + 4 * be, "0" if (be & 1) == 0 else None)
    a(f"s_lshl_b32 s{sT1}, s{sW}, 14\ns_add_u32 s{sT1}, s{sT1}, {H5}")
    for i in range(4): a(f"v_lshlrev_b32 v{240+2*i}, 16, v{36+i}\nv_and_b32 v{241+2*i}, 0xffff0000, v{36+i}")
    for i in range(8): a(f"v_add_f32 v{112+i}, 1.0, v{112+i}")
    a("H5L:")
    def h5_load(k):
        if k % 4 == 0 or k == 15: a(f"s_add_u32 s{sT0}, s{sT1}, {(k>>2)*4096}")
        a(f"buffer_load_dwordx4 {vr(128+4*k,4)}, v59, {R('ws')}, s{sT0} offen offset:{(k&3)*256} sc1")
    for k in range(16): h5_load(k)
    a("H5W:")
    for i in range(4):
        for be in range(4):
            k = 4 * i + be
            a(f"s_waitcnt vmcnt({15-k})")
            mfma(248 + 4 * (be >> 1), 228 + 4 * (be & 1), 128 + 4 * k, "0" if (i == 0 and (be & 1) == 0) else None)
            a(f"v_max3_u32 v41, v{41 if k else 129}, v{129+4*k}, v{131+4*k}")
    check([41], 41, "H5L", "H5OK", h5_load, [[129 + 4 * k, 131 + 4 * k] for k in range(16)])
    a("H5OK:")
    stamp("h5ok")
    for i in range(8): a(f"v_fmac_f32 v{240+i}, v{96+i}, v{248+i}")
    def ln(src, dst):
        a(f"v_pk_add_f32 v[36:37], {vr(src,2)}, {vr(src+2,2)}\nv_pk_mul_f32 v[38:39], {vr(src,2)}, {vr(src,2)}")
        for i in range(1, 4):
            if i > 1: a(f"v_pk_add_f32 v[36:37], v[36:37], {vr(src+2*i,2)}")
            a(f"v_pk_fma_f32 v[38:39], {vr(src+2*i,2)}, {vr(src+2*i,2)}, v[38:39]")
        a("v_add_f32 v36, v36, v37\nv_add_f32 v38, v38, v39")
        red_dpp("v_add_f32", [36, 38], R16)
        red_s("v_add_f32", [36, 38], [37, 39])
        a(f"v_mul_f32 v36, {hex(f2u(1/512))}, v36\nv_mov_b32 v37, {hex(f2u(1e-5))}\nv_fmac_f32 v37, {hex(f2u(1/512))}, v38")
        a("v_fma_f32 v37, -v36, v36, v37\nv_rsq_f32 v37, v37")
        for i in range(8): a(f"v_sub_f32 v{dst+i}, v{src+i}, v36")
        for i in range(8): a(f"v_mul_f32 v{dst+i}, v{dst+i}, v37")
    ln(240, 128)
    for i in range(8): a(f"v_fma_f32 v{128+i}, v{128+i}, v{112+i}, v{104+i}")
    ln(128, 128)
    for i in range(4): a(f"v_cvt_pk_bf16_f32 v{128+i}, v{128+2*i}, v{129+2*i}")
    a(f"s_lshl_b32 s{sT0}, s{sW}, 10\nv_add_u32 v41, s{sT0}, v60")
    a(f"ds_write_b64 v41, v[128:129] offset:{YL}\nds_write_b64 v41, v[130:131] offset:{YL+512}")
    a("MLP_Y:")
    a("s_waitcnt lgkmcnt(0)\ns_barrier")
    stamp("ybar")
    for ft in range(2):
        m = hex(0x00030003 << (2 * ft)); exec_set(m, m)
        for tau in range(2): a(f"ds_read_b128 {vr(192+8*tau+4*ft,4)}, v50 offset:{YL+tau*64}")
    exec_all()
    a(f"s_lshl_b32 s{sT0}, s{sH}, 10\ns_lshl_b32 s{sT1}, s{sW}, 7\ns_add_u32 s{sT0}, s{sT0}, s{sT1}\ns_add_u32 s{sT0}, s{sT0}, {H7}")
    a("v_lshlrev_b32 v40, 16, v40")
    k = 0
    for ft in range(2):
        for tau in range(2):
            a(f"s_waitcnt lgkmcnt({3-k})")
            mfma(136, 64 + 8 * tau + 4 * ft, 192 + 8 * tau + 4 * ft, "0" if k == 0 else None); k += 1
    exec_set("0x000f000f", "0x000f000f")
    a(f"ds_write_b128 v51, v[136:139] offset:{RED}")
    exec_all()
    a("s_waitcnt lgkmcnt(0)\ns_barrier")
    for k in range(4): a(f"ds_read2st64_b32 {vr(136+2*k,2)}, v52 offset0:{2*k} offset1:{2*k+1}")
    a("s_waitcnt lgkmcnt(2)\nv_pk_add_f32 v[136:137], v[136:137], v[138:139]\ns_waitcnt lgkmcnt(0)\nv_pk_add_f32 v[140:141], v[140:141], v[142:143]")
    a("v_add_f32 v136, v136, v40\nv_pk_add_f32 v[136:137], v[136:137], v[140:141]\nv_add_f32 v136, v136, v137")
    G0 = -2 * 0.7978845608028654 * LOG2E
    a(f"v_mul_f32 v137, v136, v136\nv_mov_b32 v138, {hex(f2u(G0))}\nv_fmac_f32 v138, {hex(f2u(G0*0.044715))}, v137\nv_mul_f32 v137, v136, v138")
    a("v_exp_f32 v137, v137\nv_add_f32 v137, 1.0, v137\nv_rcp_f32 v137, v137\nv_mul_f32 v136, v136, v137\nv_cvt_pk_bf16_f32 v136, v136, v136")
    a(f"ds_write_b16 v53, v136 offset:{HID}")
    for i in range(4):
        m = hex(0x00030003 << (2 * i)); exec_set(m, m)
        a(f"ds_read_b128 {vr(208+4*i,4)}, v57 offset:{HID}")
    exec_all()
    for i in range(4):
        a(f"s_waitcnt lgkmcnt({3-i})")
        mfma(136, 80 + 4 * i, 208 + 4 * i, "0" if i == 0 else None)
    a("v_cvt_pk_bf16_f32 v136, v136, v137\nv_cvt_pk_bf16_f32 v137, v138, v139")
    exec_set("0x00ff00ff", "0x00ff00ff")
    a(f"buffer_store_dwordx2 v[136:137], v58, {R('ws')}, s{sT0} offen sc1")
    exec_all()
    stamp("h7pub")
    a("v_lshrrev_b32 v48, 3, v1\nv_and_b32 v49, 7, v1\nv_lshlrev_b32 v49, 4, v49\nv_lshl_or_b32 v48, v48, 10, v49")
    a(f"s_cmp_ge_u32 s{sH}, 16\ns_cbranch_scc1 FIN\ns_and_b32 s{sT0}, s{sH}, 1\ns_cmp_lg_u32 s{sT0}, s{sW}\ns_cbranch_scc1 FIN")
    a(f"s_cmp_eq_u32 s{sCQ}, 0\ns_cbranch_scc1 F_D0")
    for i in range(4): a(f"v_mov_b32 v{240+i}, v{244+i}\nv_mov_b32 v{120+i}, v{124+i}")
    a("F_D0:")
    a("v_lshlrev_b32 v244, 16, v42\nv_and_b32 v245, 0xffff0000, v42\nv_lshlrev_b32 v246, 16, v43\nv_and_b32 v247, 0xffff0000, v43")
    for i in range(4): a(f"v_fmac_f32 v{240+i}, v{120+i}, v{244+i}")
    a(f"s_mul_i32 s{sT1}, s{sW}, 57344\ns_lshr_b32 s{sT0}, s{sH}, 1\ns_lshl_b32 s{sT2}, s{sT0}, 7\ns_add_u32 s{sT1}, s{sT1}, s{sT2}\ns_add_u32 s{sT1}, s{sT1}, {H7}")
    a(f"s_and_b32 s{sT2}, s{sT0}, 1\ns_lshl_b32 s{sT2}, s{sT2}, 3\ns_lshl_b32 s{sT2}, 0x00ff00ff, s{sT2}\ns_bitcmp1_b32 s{sT0}, 1\ns_cselect_b32 s{sE0}, 0, s{sT2}\ns_cselect_b32 s{sE0+1}, s{sT2}, 0")
    a(f"s_lshl_b32 s{sT2}, s{sW}, 10\ns_lshl_b32 s{sT3}, s{sCQ}, 9\ns_add_u32 s{sT2}, s{sT2}, s{sT3}")
    a("s_waitcnt vmcnt(0)")
    a("H7L:")
    def h7_load(i):
        a(f"s_add_u32 s{sT0}, s{sT1}, {i*8192}")
        a(f"buffer_load_dwordx4 {vr(128+4*i,4)}, v48, {R('ws')}, s{sT0} offen sc1")
    for i in range(7): h7_load(i)
    a("H7W:")
    for i in range(7):
        a(f"s_waitcnt vmcnt({6-i})")
        mfma(248, 224, 128 + 4 * i, "0" if i == 0 else None)
        a(f"v_max3_u32 v41, v{41 if i else 129}, v{129+4*i}, v{131+4*i}")
    check([41], 41, "H7L", "H7OK", h7_load, [[129 + 4 * k, 131 + 4 * k] for k in range(7)])
    a("H7OK:")
    stamp("h7ok")
    red_dpp("v_add_f32", [248, 249, 250, 251], ["row_ror:8"])
    for i in range(4): a(f"v_fmac_f32 v{240+i}, v{120+i}, v{248+i}")
    a("v_cvt_pk_bf16_f32 v240, v240, v241\nv_cvt_pk_bf16_f32 v241, v242, v243")
    a(f"s_mov_b64 exec, s[{sE0}:{sE0+1}]")
    a(f"buffer_store_dwordx2 v[240:241], v60, {R('out')}, s{sT2} offen")
    a("s_branch FIN")
    a("BPATH:")
    a(f"s_lshl_b32 s{sH}, s{sX}, 2\ns_lshr_b32 s{sT0}, s{sP}, 2\ns_add_u32 s{sH}, s{sH}, s{sT0}\ns_and_b32 s{sCQ}, s{sP}, 3")
    a("v_lshlrev_b32 v44, 4, v2\nv_lshl_or_b32 v44, v3, 16, v44")
    a(f"s_lshl_b32 s{sT0}, s{sW}, 19\ns_lshl_b32 s{sT1}, s{sH}, 8\ns_add_u32 s{sT0}, s{sT0}, s{sT1}")
    a(f"s_lshl_b32 s{sT2}, s{sCQ}, 17\ns_and_b32 s{sT2}, s{sT2}, 0x40000\ns_add_u32 s{sT0}, s{sT0}, s{sT2}")
    a(f"s_lshl_b32 s{sT2}, s{sCQ}, 3\ns_add_u32 s{sT2}, s{sT2}, s{sW}\ns_lshl_b32 s{sT2}, s{sT2}, 17\ns_add_u32 s{sT1}, s{sT1}, s{sT2}")
    a("v_lshl_add_u32 v48, v3, 13, v36")
    for g in range(1, 4): a(f"v_xor_b32 v{48+g}, {((g&1)*32)|((g>>1)*128)|(g*32768)}, v48")
    srd("wq", "wuk")
    a("v_lshlrev_b32 v45, 4, v2\nv_lshl_or_b32 v45, v3, 14, v45")
    a(f"s_and_b32 s{sB}, s{sH}, 16\ns_add_u32 s{sB}, s{sB}, s{sW}\ns_lshl_b32 s{sB6}, s{sB}, 7\ns_and_b32 s{sT3}, s{sH}, 15\ns_add_u32 s{sB6}, s{sB6}, s{sT3}")
    a(f"s_lshl_b32 s{sCK}, s{sB6}, 3\ns_lshl_b32 s{sB6}, s{sB6}, 2\ns_add_u32 s{sB6}, s{sB6}, s{sCQ}\ns_lshl_b32 s{sB6}, s{sB6}, 8\ns_add_u32 s{sB6}, s{sB6}, {H4}\ns_add_u32 s{sCK}, s{sCK}, {ML}")
    a(f"s_bitcmp1_b32 s{sCQ}, 0")
    stamp("prol")
    a("s_waitcnt lgkmcnt(0)\ns_cbranch_scc1 BQ1")
    H4O = [0, 0x10000, 0x100000, 0x110000]
    def clr():
        for i in range(4):
            a(f"s_add_u32 s{sT3}, s{sB6}, {H4O[i]}")
            a(f"buffer_store_dwordx4 v[40:43], v45, {R('ws')}, s{sT3} offen sc1")
    def wq_issue(rot):
        def ld(g, r):
            r ^= rot
            a(f"s_xor_b32 s{sT3}, s{sT0}, {g*262144+r*8192}")
            a(f"buffer_load_dwordx4 {vr(64+32*g+4*r,4)}, v44, {R('wq')}, s{sT3} offen{nt('wq')}")
        for r in range(4): ld(0, r)
        for g in range(4):
            a(f"s_add_u32 m0, s{sKVW}, {g*1024}")
            a(f"buffer_load_dwordx4 v{48+g}, {R('wuk')}, s{sT1} offen nt lds")
        if CLRPOS == 0: clr()
        for r in range(4, 8): ld(0, r)
        cnt_load()
        for r in range(8): ld(1, r)
    wq_issue(0)
    a("s_branch BQ2\nBQ1:")
    wq_issue(4)
    a("BQ2:")
    NC = 4 if CLRPOS == 1 else 0
    if NC: clr()
    stamp("wqiss")
    a(f"s_and_b32 s{sSZW}, s{sW}, 1\ns_and_b32 s{sT0}, s{sW}, 2\ns_lshl_b32 s{sT0}, s{sT0}, 1\ns_or_b32 s{sSZW}, s{sSZW}, s{sT0}")
    a(f"s_and_b32 s{sT0}, s{sW}, 4\ns_lshr_b32 s{sT0}, s{sT0}, 1\ns_or_b32 s{sSZW}, s{sSZW}, s{sT0}")
    late_common()
    srd("wuv", "wo", "wmod", "c")
    a("v_and_b32 v46, 7, v2\nv_lshlrev_b32 v46, 10, v46\nv_lshl_or_b32 v46, v3, 4, v46")
    a(f"s_lshl_b32 s{sT2}, s{sW}, 7\ns_lshl_b32 s{sT3}, s{sCQ}, 5\ns_and_b32 s{sT3}, s{sT3}, 64\ns_or_b32 s{sT2}, s{sT2}, s{sT3}\ns_xor_b32 s{sT3}, s{sT2}, 64")
    a(f"v_and_b32 v47, 1, v3\nv_lshlrev_b32 v47, 3, v47\nv_or_b32 v52, s{sSZW}, v47\nv_xor_b32 v52, v52, v2\nv_or_b32 v47, s{sW}, v47")
    a("v_lshlrev_b32 v47, 8, v47\nv_lshl_or_b32 v47, v52, 4, v47")
    a("v_lshrrev_b32 v53, 3, v2\nv_lshlrev_b32 v53, 15, v53\nv_lshl_or_b32 v53, v3, 3, v53")
    a(f"v_lshrrev_b32 v252, 3, v2\nv_lshlrev_b32 v252, 8, v252\nv_lshl_or_b32 v252, v3, 3, v252\ns_lshl_b32 s100, s{sW}, 5\nv_add_u32 v252, s100, v252\nv_lshlrev_b32 v253, 4, v1")
    a("s_mov_b32 s100, 0x05040100\ns_mov_b32 s101, 0x07060302")
    def transpose(g):
        for j in range(8):
            for rho in range(4):
                a(f"v_perm_b32 v{128+32*g+4*j+rho}, v{64+32*g+4*(2*rho+1)+(j>>1)}, v{64+32*g+4*(2*rho)+(j>>1)}, s{100+(j&1)}")
    a(f"s_waitcnt vmcnt({8+NC})")
    stamp("wq0")
    cnt_check("BC")
    a("s_barrier")
    stamp("bcnt")
    def h1_loads(js=(0, 1)):
        for j in js: a(f"buffer_load_dwordx4 {vr(36+204*j,4)}, v46, {R('ws')}, s{sT3 if j else sT2} offen sc1")
    h1_loads()
    for t in range(4): a(f"ds_read_b128 {vr(192+4*t,4)}, v{8+t}")
    transpose(0)
    a(f"s_waitcnt vmcnt({2+NC})")
    stamp("wq")
    transpose(1)
    a("s_branch H1W\nH1L:")
    h1_loads()
    a("H1W:\ns_waitcnt vmcnt(0)")
    check([37, 39, 241, 243], 52, "H1L", "H1OK", lambda j: h1_loads([j]), [[37, 39], [241, 243]])
    a("H1OK:")
    stamp("h1ok")
    for g in range(2):
        for j in range(8): mfma(208 + 4 * j, 36 + 204 * g, 128 + 32 * g + 4 * j, "0" if g == 0 else None)
    a("s_waitcnt lgkmcnt(0)")
    stamp("qmf")
    for j in range(8):
        a(f"v_pk_add_f32 {vr(208+4*j,2)}, {vr(208+4*j,2)}, {vr(210+4*j,2)}")
    for j in range(8): a(f"v_add_f32 v{208+4*j}, v{208+4*j}, v{209+4*j}")
    for j in range(4): a(f"v_cvt_pk_bf16_f32 v{56+j}, v{208+8*j}, v{212+8*j}")
    a("s_mov_b32 exec_hi, 0")
    a(f"ds_write_b128 v47, v[56:59] offset:{PB}")
    exec_all()
    a("s_waitcnt lgkmcnt(0)\ns_barrier")
    stamp("qbar")
    for t in range(4): a(f"ds_read_b128 {vr(64+4*t,4)}, v{4+t} offset:{PB}")
    a(f"s_lshl_b32 s{sT0}, s{sH}, 10\ns_lshl_b32 s{sT1}, s{sCQ}, 8\ns_add_u32 s{sT0}, s{sT0}, s{sT1}\ns_lshl_b32 s{sT1}, s{sW}, 5\ns_add_u32 s{sT0}, s{sT0}, s{sT1}\ns_add_u32 s{sT0}, s{sT0}, {H3}")
    for t in range(4):
        a(f"s_waitcnt lgkmcnt({3-t})")
        mfma(208, 192 + 4 * t, 64 + 4 * t, "0" if t == 0 else None)
    red_dpp("v_add_f32", [208, 209, 210, 211], R8)
    for i in range(4): a(f"v_mul_f32 v{208+i}, {hex(f2u(128**-0.5*LOG2E))}, v{208+i}")
    a("v_cvt_pk_bf16_f32 v208, v208, v209\nv_cvt_pk_bf16_f32 v209, v210, v211")
    exec_set("0x01010101", "0x01010101")
    if FL3: pub_line(208, 15, "P3")
    else: a(f"buffer_store_dwordx2 v[208:209], v53, {R('ws')}, s{sT0} offen sc1")
    exec_all()
    stamp("h3pub")
    a("v_lshlrev_b32 v47, 4, v2\nv_lshl_or_b32 v48, v3, 13, v47")
    a(f"s_lshl_b32 s{sT1}, s{sCQ}, 3\ns_add_u32 s{sT1}, s{sT1}, s{sW}\ns_lshl_b32 s{sT1}, s{sT1}, 17\ns_lshl_b32 s{sT2}, s{sH}, 8\ns_add_u32 s{sT1}, s{sT1}, s{sT2}")
    for g in range(4):
        if g: a(f"s_add_u32 s{sT1}, s{sT1}, 32768")
        a(f"buffer_load_dwordx4 {vr(192+4*g,4)}, v48, {R('wuv')}, s{sT1} offen nt")
    a("v_lshrrev_b32 v46, 3, v1\nv_and_b32 v47, 2, v46\nv_and_b32 v54, 7, v1\nv_xor_b32 v54, v54, v47\nv_lshlrev_b32 v54, 4, v54\nv_lshl_or_b32 v54, v46, 10, v54\nv_xor_b32 v55, 64, v54")
    a("v_mul_u32_u24 v57, 24576, v3\nv_lshl_add_u32 v57, v2, 4, v57")
    c_addr(58)
    a(f"s_lshl_b32 s{sKVW}, s{sW}, 12\ns_add_u32 s{sKVW}, s{sKVW}, {B2L}")
    a(f"s_lshl_b32 s{sT0}, s{sX}, 1\ns_lshr_b32 s{sT1}, s{sP}, 3\ns_add_u32 s{sT0}, s{sT0}, s{sT1}\ns_lshl_b32 s{sT0}, s{sT0}, 3\ns_add_u32 s{sT0}, s{sT0}, s{sW}\ns_lshl_b32 s{sT0}, s{sT0}, 15")
    a(f"s_and_b32 s{sT1}, s{sP}, 7\ns_lshl_b32 s{sT1}, s{sT1}, 7\ns_add_u32 s{sT0}, s{sT0}, s{sT1}")
    for g in range(4):
        a(f"s_add_u32 m0, s{sKVW}, {g*1024}")
        if g: a(f"s_add_u32 s{sT0}, s{sT0}, 8192")
        a(f"buffer_load_dwordx4 v{54+(g&1)}, {R('wo')}, s{sT0} offen nt lds")
    a(f"v_lshlrev_b32 v44, 1, v3\nv_xor_b32 v44, v44, v2\nv_lshlrev_b32 v44, 4, v44\nv_lshl_or_b32 v44, v3, 8, v44")
    a(f"s_lshl_b32 s{sT0}, s{sW}, 12\ns_add_u32 s{sT0}, s{sT0}, {KV}\nv_add_u32 v60, s{sT0}, v44\nv_xor_b32 v59, {2048|128}, v60")
    a(f"s_cmp_lt_u32 s{sP}, 8\ns_cbranch_scc1 NOHM")
    a(f"s_and_b32 s{sT0}, s{sP}, 3\ns_lshl_b32 s{sT0}, s{sT0}, 3\ns_add_u32 s{sT0}, s{sT0}, s{sW}\ns_lshl_b32 s{sT1}, s{sT0}, 5\ns_mul_i32 s{sT0}, s{sT0}, {16*6144}")
    a(f"s_lshl_b32 s{sT2}, s{sX}, 1\ns_bfe_u32 s{sT3}, s{sP}, 0x10002\ns_add_u32 s{sT2}, s{sT2}, s{sT3}\ns_lshl_b32 s{sT2}, s{sT2}, 8\ns_add_u32 s{sT0}, s{sT0}, s{sT2}\ns_add_u32 s{sT0}, s{sT0}, 2048")
    a(f"buffer_load_dwordx2 v[112:113], v58, {R('c')}, s{sT1} offen")
    for i in range(4):
        a(f"buffer_load_dwordx4 {vr(96+4*i,4)}, v57, {R('wmod')}, s{sT0} offen nt")
        if i < 3: a(f"s_add_u32 s{sT0}, s{sT0}, 6144")
    a("s_waitcnt vmcnt(9)")
    for g in range(4): a(f"ds_write_b128 v{60-(g>>1)}, {vr(192+4*g,4)} offset:{(g&1)*1024}")
    a("s_waitcnt vmcnt(0)\nv_mov_b32 v59, v45")
    silu_onehot(112, 128, 64)
    a(f"s_lshl_b32 s{sT2}, s{sX}, 1\ns_bfe_u32 s{sT3}, s{sP}, 0x10002\ns_add_u32 s{sT2}, s{sT2}, s{sT3}")
    a(f"s_lshr_b32 s{sT3}, s{sT2}, 2\ns_lshl_b32 s{sT3}, s{sT3}, 13\ns_and_b32 s{sT2}, s{sT2}, 3\ns_lshl_b32 s{sT2}, s{sT2}, 8\ns_add_u32 s{sT3}, s{sT3}, s{sT2}")
    a(f"s_and_b32 s{sT2}, s{sP}, 3\ns_lshl_b32 s{sT2}, s{sT2}, 10\ns_add_u32 s{sT3}, s{sT3}, s{sT2}\ns_add_u32 s{sT3}, s{sT3}, {HM}")
    a("v_and_b32 v49, 1, v3\nv_lshlrev_b32 v50, 4, v2\nv_lshl_or_b32 v50, v49, 3, v50\nv_lshrrev_b32 v49, 1, v3\nv_lshl_or_b32 v50, v49, 12, v50")
    mod_reduce(96, 128)
    a(f"s_cmp_lg_u32 s{sW}, 0\ns_cbranch_scc1 HMDONE")
    sum8(44, RED, 1024, 64)
    a("v_cvt_pk_bf16_f32 v64, v64, v65\nv_cvt_pk_bf16_f32 v65, v66, v67")
    a(f"buffer_store_dwordx2 v[64:65], v50, {R('ws')}, s{sT3} offen sc1")
    a("HMDONE:\nv_mov_b32 v45, v59\ns_branch HM2\nNOHM:")
    a("s_waitcnt vmcnt(4)")
    for g in range(4): a(f"ds_write_b128 v{60-(g>>1)}, {vr(192+4*g,4)} offset:{(g&1)*1024}")
    a("s_waitcnt vmcnt(0) lgkmcnt(0)\ns_barrier\nHM2:")
    stamp("b2")
    a("v_lshrrev_b32 v47, 2, v2\nv_and_b32 v48, 1, v3\nv_lshl_or_b32 v48, v48, 2, v47\nv_lshlrev_b32 v48, 1, v48")
    a(f"v_bfe_u32 v49, v2, 1, 1\ns_lshl_b32 s{sT0}, s{sW}, 1\nv_or_b32 v49, s{sT0}, v49\nv_xor_b32 v48, v48, v49\nv_lshlrev_b32 v48, 4, v48")
    a(f"v_and_b32 v49, 1, v2\nv_lshl_or_b32 v48, v49, 3, v48\nv_lshl_add_u32 v49, v3, 3, v47\nv_lshl_or_b32 v46, v49, 8, v48\nv_add_u32 v46, {KV}, v46")
    for t in range(4):
        for hh in range(2): a(f"ds_read_b64_tr_b16 {vr(96+4*t+2*hh,2)}, v46 offset:{t*8192+hh*1024}")
    a("v_mov_b32 v58, v45")
    a("v_lshrrev_b32 v47, 2, v2\nv_and_b32 v48, 2, v47\nv_and_b32 v49, 1, v3\nv_lshl_or_b32 v48, v49, 2, v48\nv_bfe_u32 v49, v2, 1, 1\nv_or_b32 v48, v48, v49\nv_lshlrev_b32 v48, 4, v48")
    a(f"v_and_b32 v49, 1, v2\nv_lshl_or_b32 v48, v49, 3, v48\nv_lshl_add_u32 v50, v3, 3, v47\nv_lshl_or_b32 v44, v50, 7, v48\nv_add_u32 v44, s{sKVW}, v44")
    for i in range(1, 4): a(f"v_xor_b32 v{44+i}, {i<<5}, v44")
    for i in range(4):
        for hh in range(2): a(f"ds_read_b64_tr_b16 {vr(64+4*i+2*hh,2)}, v{44+i} offset:{hh*512}")
    a("v_lshrrev_b32 v48, 3, v2\nv_lshlrev_b32 v49, 13, v48\nv_lshl_or_b32 v49, v3, 7, v49\nv_lshlrev_b32 v60, 10, v48\nv_lshl_or_b32 v60, v3, 3, v60")
    a(f"v_lshrrev_b32 v48, 1, v3\nv_lshlrev_b32 v48, 3, v48\nv_or_b32 v51, s{sW}, v48\nv_xor_b32 v50, v48, v2\nv_xor_b32 v50, s{sSZW}, v50\nv_lshlrev_b32 v50, 4, v50\nv_lshl_or_b32 v50, v51, 8, v50")
    a(f"v_xor_b32 v51, v2, v3\nv_and_b32 v51, 1, v51\nv_lshl_or_b32 v50, v51, 3, v50\nv_lshlrev_b32 v59, 3, v2\ns_lshl_b32 s{sT3}, s{sW}, 3\nv_add_u32 v51, s{sT3}, v59")
    a("v_cmp_gt_u32 vcc, 8, v2")
    for r in range(4): a(f"v_cndmask_b32 v{224+r}, 0, v{32+r}, vcc\nv_xor_b32 v{228+r}, v{224+r}, v{32+r}")
    a(f"s_add_u32 s{sT1}, s{sB6}, {H4O[1]}\ns_add_u32 s{sT2}, s{sB6}, {H4O[2]}\ns_add_u32 s{sT3}, s{sB6}, {H4O[3]}")
    stamp("h4poll")
    a("MLL:")
    def ml_load(j): a(f"buffer_load_dwordx2 {vr(44+2*j,2)}, v49, {R('ws')}, s{sCK} offen offset:{512*j} sc1")
    ml_load(0); ml_load(1)
    a("MLW:\ns_waitcnt vmcnt(0)")
    check([45, 47], 82, "MLL", "MLOK", ml_load, [[45], [47]])
    a("MLOK:")
    stamp("mlok")
    def h4_loads(js=range(4)):
        for i in js: a(f"buffer_load_dwordx4 {vr(128+4*i,4)}, v58, {R('ws')}, s{(sB6, sT1, sT2, sT3)[i]} offen sc1")
    h4_loads()
    a("v_max_f32 v52, v44, v46")
    red_s("v_max_f32", [52], [53])
    a("v_sub_f32 v80, v44, v52\nv_sub_f32 v81, v46, v52\nv_exp_f32 v80, v80\nv_exp_f32 v81, v81")
    a("v_cvt_pk_bf16_f32 v80, v80, v80\nv_cvt_pk_bf16_f32 v81, v81, v81")
    for i in range(4):
        for r in range(4): a(f"v_and_b32 v{144+4*i+r}, v{80+(i&1)}, v{224+4*(i>>1)+r}")
    a("v_and_b32 v80, 0xffff0000, v80\nv_and_b32 v81, 0xffff0000, v81\nv_mul_f32 v53, v80, v45\nv_fmac_f32 v53, v81, v47")
    red_s("v_add_f32", [53], [82])
    a(f"s_mov_b64 exec, 0x0101\nds_write_b64 v51, v[52:53] offset:{MLW}")
    exec_all()
    a(f"s_lshl_b32 s{sT0}, s{sH}, 3\ns_add_u32 s{sT0}, s{sT0}, s{sCQ}\ns_lshl_b32 s{sT0}, s{sT0}, 3\ns_add_u32 s{sT0}, s{sT0}, s{sW}\ns_lshl_b32 s{sT0}, s{sT0}, 5\ns_add_u32 s{sT0}, s{sT0}, {H4B}")
    a("s_branch H4W\nH4L:")
    h4_loads()
    a("H4W:")
    for i in range(4):
        a(f"s_waitcnt vmcnt({3-i})")
        mfma(208, 144 + 4 * i, 128 + 4 * i, "0" if i == 0 else None)
    check([131, 135, 139, 143], 82, "H4L", "H4OK", lambda j: h4_loads([j]), [[131 + 4 * i] for i in range(4)])
    a("H4OK:")
    stamp("h4ok")
    a("v_cvt_pk_bf16_f32 v208, v208, v209\nv_cvt_pk_bf16_f32 v209, v210, v211")
    a(f"ds_write_b64 v50, v[208:209] offset:{PB}")
    a("s_waitcnt lgkmcnt(0)\ns_barrier")
    a(f"ds_read_b64 v[52:53], v59 offset:{MLW}")
    for t in range(4): a(f"ds_read_b128 {vr(80+4*t,4)}, v{4+t} offset:{PB}")
    a("s_waitcnt lgkmcnt(4)")
    a(f"v_max_f32_dpp v44, v52, v52 {R8[0]} {FULL}")
    for t in range(4):
        a(f"s_waitcnt lgkmcnt({3-t})")
        mfma(212, 96 + 4 * t, 80 + 4 * t, "0" if t == 0 else None)
        if t < 2: a(f"v_max_f32_dpp v44, v44, v44 {R8[t+1]} {FULL}")
        if t == 2: a("v_sub_f32 v44, v52, v44\nv_exp_f32 v44, v44")
    a("v_mul_f32 v53, v53, v44")
    red_dpp("v_add_f32", [53], R8)
    a("v_rcp_f32 v53, v53")
    for i in range(4): a(f"v_mul_f32 v{212+i}, v{212+i}, v44")
    red_dpp("v_add_f32", [212, 213, 214, 215], R8)
    for i in range(4): a(f"v_mul_f32 v{212+i}, v{212+i}, v53")
    a("v_cvt_pk_bf16_f32 v212, v212, v213\nv_cvt_pk_bf16_f32 v213, v214, v215")
    exec_set("0x01010101", "0x01010101")
    if FL4: pub_line(212, 10, "P4")
    else: a(f"buffer_store_dwordx2 v[212:213], v60, {R('ws')}, s{sT0} offen sc1")
    exec_all()
    stamp("h4bpub")
    a("v_and_b32 v48, 7, v2\nv_lshlrev_b32 v48, 8, v48\nv_lshl_or_b32 v48, v3, 4, v48")
    a(f"s_lshl_b32 s{sT1}, s{sX}, 1\ns_lshr_b32 s{sT0}, s{sP}, 3\ns_add_u32 s{sT1}, s{sT1}, s{sT0}")
    a(f"s_lshl_b32 s{sT0}, s{sT1}, 1\ns_lshr_b32 s{sT2}, s{sW}, 2\ns_add_u32 s{sT0}, s{sT0}, s{sT2}\ns_lshl_b32 s{sT0}, s{sT0}, 11\ns_and_b32 s{sT2}, s{sW}, 3\ns_lshl_b32 s{sT2}, s{sT2}, 6\ns_add_u32 s{sT0}, s{sT0}, s{sT2}\ns_add_u32 s{sT0}, s{sT0}, {H4B}")
    a(f"s_lshl_b32 s{sT1}, s{sT1}, 10\ns_and_b32 s{sT2}, s{sP}, 7\ns_lshl_b32 s{sT2}, s{sT2}, 7\ns_add_u32 s{sT1}, s{sT1}, s{sT2}\ns_add_u32 s{sT1}, s{sT1}, {H5}")
    a(f"s_lshl_b32 s{sT2}, s{sW}, 9\nv_lshlrev_b32 v49, 2, v2\nv_lshl_or_b32 v49, v3, 8, v49\nv_add_u32 v49, s{sT2}, v49")
    a("v_lshlrev_b32 v50, 4, v1\nv_lshlrev_b32 v51, 3, v2\nv_lshl_or_b32 v51, v3, 14, v51")
    a("s_waitcnt lgkmcnt(0)" if S8NW else "s_waitcnt vmcnt(0) lgkmcnt(0)")
    stamp("s8poll")
    a("S8L:")
    def s8_load(j): a(f"buffer_load_dwordx4 v[36:39], v48, {R('ws')}, s{sT0} offen sc1")
    s8_load(0)
    a("S8W:\ns_waitcnt vmcnt(0)")
    for i in range(4): mfma(208 + 4 * i, 36, 64 + 4 * i, "0")
    check([39], 52, "S8L", "S8OK", s8_load, [[39]])
    a("S8OK:")
    stamp("s8ok")
    for i in range(4): a(f"v_pk_add_f32 {vr(208+4*i,2)}, {vr(208+4*i,2)}, {vr(210+4*i,2)}")
    for i in range(4): a(f"v_add_f32 v{208+4*i}, v{208+4*i}, v{209+4*i}")
    a("s_mov_b32 exec_hi, 0")
    a(f"ds_write2_b32 v49, v208, v212 offset0:0 offset1:16\nds_write2_b32 v49, v216, v220 offset0:32 offset1:48")
    a("s_waitcnt lgkmcnt(0)\ns_barrier")
    a(f"s_cmp_lg_u32 s{sW}, 0\ns_cbranch_scc1 FIN")
    sum8(50, RED, 512, 64)
    a("v_cvt_pk_bf16_f32 v64, v64, v65\nv_cvt_pk_bf16_f32 v65, v66, v67")
    a(f"buffer_store_dwordx2 v[64:65], v51, {R('ws')}, s{sT1} offen sc1")
    a("FIN:")
    if stamps:
        exec_all()
        a("s_waitcnt vmcnt(0)\ns_memrealtime s[100:101]\ns_waitcnt lgkmcnt(0)")
        for k in range(11): a(f"v_writelane_b32 v36, s{80+2*k}, {k}")
        a(f"v_writelane_b32 v36, s{sIT}, 11")
        a(f"s_lshl_b32 s{sT0}, s2, 3\ns_add_u32 s{sT0}, s{sT0}, s{sW}\ns_lshl_b32 s{sT0}, s{sT0}, 6\ns_add_u32 s{sT0}, s{sT0}, {STAMP}")
        a("v_lshlrev_b32 v37, 2, v1\ns_mov_b64 exec, 0xffff")
        a(f"buffer_store_dword v36, v37, {R('ws')}, s{sT0} offen")
    a("s_waitcnt vmcnt(0)")
    if PROBE:
        if PROBE == "end": a("s_memrealtime s[82:83]")
        if PWG is not None: a(f"s_cmp_lg_u32 s2, {PWG}\ns_cbranch_scc1 END")
        a("s_waitcnt lgkmcnt(0)\ns_add_u32 s82, s82, 3000\nPRB:\ns_sleep 2\ns_memrealtime s[84:85]\ns_waitcnt lgkmcnt(0)\ns_sub_u32 s86, s84, s82\ns_cmp_lt_i32 s86, 0\ns_cbranch_scc1 PRB")
    a("END:\ns_endpgm")
    lines, pads = hazard.fix(a.lines)
    return wrap("\n".join(lines) + "\n", 256, 512, 160 * 1024)

if __name__ == "__main__":
    import sys
    open(sys.argv[1] if len(sys.argv) > 1 else "k.s", "w").write(gen())
```

```python
from asmlib import *
import hazard, struct

def f2u(x): return struct.unpack("<I", struct.pack("<f", x))[0]
LOG2E = 1.4426950408889634
H1, H3, H4B, H5, HM, H7, ML, H4 = 0, 0x10000, 0x20000, 0x30000, 0x38000, 0x50000, 0x40000, 0x100000
STAMP = 0x800000
QL, PB, MX, MLW, YL, HID, RED, KV = 0, 16384, 20480, 20992, 21504, 23552, 0, 32768
B2L, B3L = KV + 32768, KV + 65536
PA, MXA, NCLR = KV, KV + 8192, 48
SRD = dict(ws=4, ckv=8, wq=12, wuk=16, wuv=20, wo=24, w1=28, w2=32, wmod=36, x=40, c=44, b1=48, b2=52, out=56, dbg=60)
def R(n): return f"s[{SRD[n]}:{SRD[n]+3}]"
def vr(a, n): return f"v[{a}:{a+n-1}]" if n > 1 else f"v{a}"
sW, sX, sB, sP = 3, 64, 65, 66
sT0, sT1, sT2, sT3, sIT = 67, 68, 69, 70, 71
sCK, sKVW, sE0, sE1 = 72, 73, 74, 75
sH, sCQ, sB6 = 76, 77, 78
sSZW = 79
SPIN = 1 << 16
FULL = "row_mask:0xf bank_mask:0xf"

def gen(NPRE=4, stamps=False, NT='', NPS1=4, HRD=1, S8NW=1, EH3=1, CPF=1, PAD=0, PADR='0123', CLRPOS=2, W2E=False, FULLST=True, FL3=True, FL4=True, ORD=1, THR=0, MB=2, NOKV=16, GATE='H3 ML', SLP=0, S1X=8, PROBE=None, PWG=None):
    a = Asm()
    global LAST_ORD, LAST_S1X; LAST_ORD = ORD; LAST_S1X = S1X
    if NPS1 is None: NPS1 = NPRE
    def nt(n): return ' nt' if n in NT.split() else ''
    def stamp(k):
        if PAD: a.lines.append(f"    s_nop 0 ;M {k}")
        if PROBE and (k == PROBE or k == "start"): a("s_memrealtime s[82:83]")
        if stamps and k in stamps:
            i = stamps.index(k); a(f"s_memrealtime s[{80+2*i}:{81+2*i}]")
    def exec_set(lo, hi): a(f"s_mov_b32 exec_lo, {lo}\ns_mov_b32 exec_hi, {hi}")
    def exec_all(): a("s_mov_b64 exec, -1")
    def mfma(d, A, B, c=None): a(f"v_mfma_f32_16x16x32_bf16 {vr(d,4)}, {vr(A,4)}, {vr(B,4)}, {vr(d,4) if c is None else c}")
    def red_s(op, regs, tmps):
        for sw in ("v_permlane32_swap_b32", "v_permlane16_swap_b32"):
            for r, t in zip(regs, tmps): a(f"v_mov_b32 v{t}, v{r}")
            for r, t in zip(regs, tmps): a(f"{sw} v{r}, v{t}")
            for r, t in zip(regs, tmps): a(f"{op} v{r}, v{r}, v{t}")
    def red_dpp(op, regs, steps):
        for st in steps:
            for r in regs: a(f"{op}_dpp v{r}, v{r}, v{r} {st} {FULL}")
    R8 = ["quad_perm:[1,0,3,2]", "quad_perm:[2,3,0,1]", "row_half_mirror"]
    R16 = ["row_ror:8", "row_ror:4", "row_ror:2", "row_ror:1"]
    def check(dw, tmp, loop, out, emit=None, chk=None, glane=63):
        dw = list(dw)
        if len(dw) == 1: cur = dw.pop()
        else:
            cur = None
            while dw:
                if cur is None:
                    if len(dw) >= 3: a(f"v_max3_u32 v{tmp}, v{dw[0]}, v{dw[1]}, v{dw[2]}"); dw = dw[3:]
                    else: a(f"v_max_u32 v{tmp}, v{dw[0]}, v{dw[1]}"); dw = dw[2:]
                    cur = tmp
                elif len(dw) >= 2: a(f"v_max3_u32 v{tmp}, v{tmp}, v{dw[0]}, v{dw[1]}"); dw = dw[2:]
                else: a(f"v_max_u32 v{tmp}, v{tmp}, v{dw[0]}"); dw = dw[1:]
        a(f"v_cmp_eq_u32 vcc, -1, v{cur}")
        a(f"s_cbranch_vccz {out}")
        if emit and loop[:2] in GATE.split():
            t = loop[:2]
            def miss(j):
                c = chk[j]
                if len(c) == 2: a(f"v_max_u32 v{tmp}, v{c[0]}, v{c[1]}")
                a(f"v_cmp_eq_u32 vcc, -1, v{tmp if len(c) == 2 else c[0]}")
            exec_set(hex((1 << glane) & 0xffffffff), hex((1 << glane) >> 32))
            a(f"{t}G:")
            miss(len(chk) - 1)
            a(f"s_cbranch_vccz {t}R")
            if SLP: a(f"s_sleep {SLP}")
            emit(len(chk) - 1)
            a(f"s_add_u32 s{sIT}, s{sIT}, 1\ns_cmp_lt_u32 s{sIT}, {SPIN}\ns_waitcnt vmcnt(0)\ns_cbranch_scc1 {t}G\n{t}R:")
            for j in range(len(chk)):
                exec_all()
                miss(j)
                a("s_mov_b64 exec, vcc")
                emit(j)
            exec_all()
            a("s_waitcnt vmcnt(0)")
            loop = t + "W"
        a(f"s_add_u32 s{sIT}, s{sIT}, 1\ns_cmp_lt_u32 s{sIT}, {SPIN}\ns_cbranch_scc1 {loop}")
    def ckv_dma(k):
        q, g = k >> 2, k & 3
        if k >= NOKV: return
        a(f"s_add_u32 m0, s{sKVW}, {q*3840+g*1024}")
        a(f"buffer_load_dwordx4 v{12+g}, {R('ckv')}, s{sCK} offen offset:{q*256}{nt('ckv')} lds")

    def late_common():
        a("v_and_b32 v37, 9, v2\nv_and_b32 v38, 2, v2\nv_lshl_or_b32 v37, v38, 1, v37\nv_bfe_u32 v38, v2, 2, 1\nv_lshl_or_b32 v37, v38, 1, v37")
        a("v_xor_b32 v38, v37, v3\nv_lshlrev_b32 v38, 4, v38\nv_lshl_or_b32 v4, v2, 8, v38")
        for t in range(1, 4): a(f"v_xor_b32 v{4+t}, {t<<6}, v4")
        for t in range(4): a(f"v_add_u32 v{8+t}, s{sKVW}, v{4+t}")
        a(f"s_lshl_b32 s{sT0}, s{sW}, 1\nv_lshrrev_b32 v38, 1, v3\nv_or_b32 v38, s{sT0}, v38\nv_xor_b32 v38, v38, v37")
        a("v_lshlrev_b32 v38, 4, v38\nv_lshl_or_b32 v38, v2, 8, v38\nv_and_b32 v39, 1, v3\nv_lshl_or_b32 v61, v39, 3, v38")
        masks()
    def masks():
        a("v_and_b32 v38, 1, v2\nv_lshlrev_b32 v38, 4, v38\nv_mov_b32 v39, 0xffff\nv_lshlrev_b32 v39, v38, v39\nv_bfe_u32 v38, v2, 1, 2")
        for r in range(4):
            a(f"v_cmp_eq_u32 vcc, {r}, v38\nv_cndmask_b32 v{32+r}, 0, v39, vcc")
    def c_addr(dst):
        a(f"v_lshrrev_b32 v{dst}, 3, v2\nv_lshlrev_b32 v{dst}, 10, v{dst}\nv_lshl_or_b32 v{dst}, v3, 3, v{dst}")
    def silu_onehot(cr, A, t):
        a(f"v_lshlrev_b32 v{t}, 16, v{cr}\nv_and_b32 v{t+1}, 0xffff0000, v{cr}\nv_lshlrev_b32 v{t+2}, 16, v{cr+1}\nv_and_b32 v{t+3}, 0xffff0000, v{cr+1}")
        for i in range(4): a(f"v_mul_f32 v{t+4+i}, {hex(f2u(-LOG2E))}, v{t+i}")
        for i in range(4): a(f"v_exp_f32 v{t+4+i}, v{t+4+i}")
        for i in range(4): a(f"v_add_f32 v{t+4+i}, 1.0, v{t+4+i}")
        for i in range(4): a(f"v_rcp_f32 v{t+4+i}, v{t+4+i}")
        for i in range(4): a(f"v_mul_f32 v{t+i}, v{t+i}, v{t+4+i}")
        for i in range(4): a(f"v_cvt_pk_bf16_f32 v{t+i}, v{t+i}, v{t+i}")
        for i in range(4):
            for r in range(4): a(f"v_and_b32 v{A+4*i+r}, v{t+i}, v{32+r}")
    def mod_reduce(W, A):
        for i in range(4): mfma(208, A + 4 * i, W + 4 * i, "0" if i == 0 else None)
        a(f"s_lshl_b32 s{sT0}, s{sW}, 10\nv_lshlrev_b32 v44, 4, v1\nv_add_u32 v45, s{sT0}, v44")
        a(f"ds_write_b128 v45, v[208:211] offset:{RED}\ns_waitcnt lgkmcnt(0)\ns_barrier")
    def sum8(addr, base, stride, buf, n=8):
        for k in range(n): a(f"ds_read_b128 {vr(buf+4*k,4)}, v{addr} offset:{base+k*stride}")
        for k in range(0, n, 2):
            a(f"s_waitcnt lgkmcnt({n-2-k})")
            for hlf in (0, 2): a(f"v_pk_add_f32 {vr(buf+4*k+hlf,2)}, {vr(buf+4*k+hlf,2)}, {vr(buf+4*k+4+hlf,2)}")
            if k:
                for hlf in (0, 2): a(f"v_pk_add_f32 {vr(buf+hlf,2)}, {vr(buf+hlf,2)}, {vr(buf+4*k+hlf,2)}")

    def w1_dma(half):
        a(f"s_and_b32 s{sT1}, s{sP}, 1")
        if half: a(f"s_xor_b32 s{sT1}, s{sT1}, 1")
        a(f"s_lshl_b32 s{sT0}, s{sW}, 1\ns_add_u32 s{sT0}, s{sT0}, s{sT1}\ns_mul_i32 s{sT0}, s{sT0}, {32*3584}")
        a(f"s_lshl_b32 s{sT2}, s{sX}, 3\ns_add_u32 s{sT2}, s{sT2}, s{sP}\ns_lshl_b32 s{sT2}, s{sT2}, 6\ns_add_u32 s{sT0}, s{sT0}, s{sT2}")
        a(f"s_lshl_b32 s{sT1}, s{sT1}, 11\ns_add_u32 m0, s{sKVW}, s{sT1}")
        a(f"buffer_load_dwordx4 v56, {R('w1')}, s{sT0} offen{nt('w1')} lds")
        a(f"s_add_u32 m0, m0, 1024\ns_add_u32 s{sT0}, s{sT0}, {16*3584}")
        a(f"buffer_load_dwordx4 v56, {R('w1')}, s{sT0} offen{nt('w1')} lds")
    def srd(*ns):
        for n in ns: a(f"s_mov_b32 s{SRD[n]+2}, {SIZES[n]}\ns_mov_b32 s{SRD[n]+3}, 0x00020000")
    def cnt_load():
        a(f"s_cmp_eq_u32 s{sW}, 7\ns_cselect_b64 exec, 1, 0\nbuffer_load_dword v63, v62, {R('dbg')}, 0 offen offset:128 sc1")
        exec_all()
    def cnt_check(tag):
        a(f"s_cmp_lg_u32 s{sW}, 7\ns_cbranch_scc1 {tag}_OK\n{tag}_CK:")
        a(f"v_readfirstlane_b32 s{sE0}, v63")
        a(f"s_cmp_lg_u32 s{sE0}, 0\ns_cbranch_scc1 {tag}_OK")
        cnt_load()
        a(f"s_add_u32 s{sIT}, s{sIT}, 1\ns_cmp_lt_u32 s{sIT}, {SPIN}\ns_waitcnt vmcnt(0)\ns_cbranch_scc1 {tag}_CK")
        a(f"{tag}_OK:")
    def pub_line(r, sh, tag):
        a(f"ds_write_b64 v252, {vr(r,2)} offset:{MX}")
        exec_all()
        a(f"v_lshlrev_b32 v254, {sh}, v3\nv_lshl_or_b32 v254, v2, 4, v254")
        a(f"s_cmp_lg_u32 s{sW}, 0\ns_waitcnt lgkmcnt(0)\ns_barrier\ns_cbranch_scc1 {tag}_E")
        a(f"s_mov_b32 exec_hi, 0\nds_read_b128 {vr(r,4)}, v253 offset:{MX}\ns_waitcnt lgkmcnt(0)")
        a(f"buffer_store_dwordx4 {vr(r,4)}, v254, {R('ws')}, s{sT0} offen sc1\n{tag}_E:")
    a("s_cmp_ge_u32 s2, 256\ns_cbranch_scc1 END")
    if stamps:
        for i in range(1, 10): a(f"s_mov_b32 s{80+2*i}, 0")
    stamp("start")
    if CPF:
        a("s_getpc_b64 s[76:77]\nPC0:\nv_lshlrev_b32 v254, 7, v0\nv_mov_b32 v253, s77\nv_add_co_u32 v252, vcc, s76, v254\nv_addc_co_u32 v253, vcc, 0, v253, vcc")
        a(f"s_mov_b32 s78, END-PC0\ns_cmp_ge_u32 s2, {160 if CPF == 1 else 0}\ns_cselect_b32 s78, s78, 0\nv_cmp_gt_u32 vcc, s78, v254\ns_and_b64 exec, exec, vcc\ns_cbranch_execz NOPF")
        a("global_load_dword v255, v[252:253], off\nNOPF:")
        exec_all()
    for n in ["wmod", "wq", "ckv", "ws", "c", "wuk", "x", "dbg", "wuv", "wo", "w1", "w2", "b1", "b2", "out"]:
        a(f"s_load_dwordx2 s[{SRD[n]}:{SRD[n]+1}], s[0:1], {KOFF[n]}")
    a("v_lshrrev_b32 v3, 6, v0\nv_and_b32 v1, 63, v0\nv_and_b32 v2, 15, v0")
    a(f"v_readfirstlane_b32 s{sW}, v3")
    a("v_lshrrev_b32 v3, 4, v1")
    a(f"s_and_b32 s{sX}, s2, 7\ns_lshr_b32 s{sP}, s2, 4\ns_mov_b32 s{sIT}, 0")
    srd("ws", "dbg")
    a("v_and_b32 v36, 2, v3\nv_add_u32 v36, v36, v3\nv_xor_b32 v36, v36, v2\nv_lshlrev_b32 v36, 4, v36")
    a("v_mov_b32 v40, -1\nv_mov_b32 v41, -1\nv_mov_b32 v42, -1\nv_mov_b32 v43, -1\nv_mov_b32 v62, 0")
    a(f"s_lshl_b32 s{sT1}, s{sW}, 14\ns_add_u32 s{sKVW}, s{sT1}, {KV}")
    if ORD == 0: a("s_bitcmp1_b32 s2, 3\ns_cbranch_scc1 BPATH")
    else:
        a(f"s_lshr_b32 s{sT0}, s2, 3\ns_sub_u32 s{sP}, s{sT0}, {ORD*4}\ns_cmp_lt_u32 s{sP}, 16\ns_cbranch_scc1 BPATH\ns_and_b32 s{sP}, s{sT0}, 15")
    srd("ckv")
    a(f"s_lshl_b32 s{sT0}, s{sX}, 4\ns_add_u32 s{sB}, s{sT0}, s{sP}\ns_lshl_b32 s{sCK}, s{sB}, 17\ns_add_u32 s{sCK}, s{sCK}, s{sT1}")
    a("v_lshl_add_u32 v12, v3, 10, v36")
    for g in range(1, 4):
        a(f"v_xor_b32 v{12+g}, {((g&1)*32)|((g>>1)*128)|(g*4096)}, v12")
    stamp("prol")
    sX1, sP1 = sH, sCQ
    if S1X == 8: a(f"s_mov_b32 s{sX1}, s{sX}\ns_mov_b32 s{sP1}, s{sP}\ns_cmp_ge_u32 s{sP}, 4\ns_cbranch_scc1 A_PLAIN")
    else: a(f"s_and_b32 s{sX1}, s{sP}, 4\ns_or_b32 s{sX1}, s{sX1}, s{sX}\ns_and_b32 s{sP1}, s{sP}, 3\ns_lshl_b32 s{sT0}, s{sX}, 1\ns_or_b32 s{sT0}, s{sT0}, s{sP}\ns_cmp_ge_u32 s{sT0}, 8\ns_cbranch_scc1 A_PLAIN")
    srd("c", "wmod", "x")
    c_addr(46)
    a("v_and_b32 v47, 7, v2\nv_lshlrev_b32 v47, 4, v47\nv_lshrrev_b32 v48, 3, v2\nv_lshl_or_b32 v48, v48, 10, v47")
    a("v_mul_u32_u24 v49, 24576, v3\nv_add_u32 v48, v48, v49")
    a("v_and_b32 v49, 1, v3\nv_lshl_or_b32 v47, v49, 3, v47\nv_lshrrev_b32 v49, 1, v3")
    a("v_lshl_or_b32 v50, v49, 12, v47\nv_lshl_or_b32 v51, v49, 10, v47\nv_lshlrev_b32 v52, 5, v1")
    a(f"s_lshl_b32 s{sT0}, s{sP1}, 3\ns_add_u32 s{sT0}, s{sT0}, s{sW}\ns_lshl_b32 s{sT1}, s{sT0}, 5")
    a(f"s_mul_i32 s{sT0}, s{sT0}, {16*6144}\ns_lshl_b32 s{sT2}, s{sX1}, 7\ns_add_u32 s{sT0}, s{sT0}, s{sT2}")
    a(f"s_lshl_b32 s{sT3}, s{sP1}, 10\ns_add_u32 s{sT3}, s{sT3}, s{sT2}")
    a(f"s_lshl_b32 s{sB6}, s{sP1}, 3\ns_add_u32 s{sB6}, s{sB6}, s{sX1}\ns_lshl_b32 s{sB6}, s{sB6}, 13\ns_add_u32 s{sB6}, s{sB6}, {H3}\nv_lshlrev_b32 v44, 4, v0")
    a("s_waitcnt lgkmcnt(0)")
    a(f"buffer_load_dwordx2 v[36:37], v46, {R('c')}, s{sT1} offen")
    a(f"buffer_store_dwordx4 v[40:43], v44, {R('ws')}, s{sB6} offen sc1")
    a(f"s_cmp_lg_u32 s{sW}, 0\ns_cbranch_scc1 S1_W")
    exec_set("0x00ff00ff", "0x00ff00ff")
    a(f"buffer_store_dwordx2 v[40:41], v50, {R('ws')}, s{sT3} offen sc1")
    exec_all()
    a(f"buffer_load_dwordx4 v[80:83], v52, {R('x')}, 0 offen\nbuffer_load_dwordx4 v[84:87], v52, {R('x')}, 0 offen offset:16")
    a(f"buffer_load_dwordx2 v[88:89], v51, {R('x')}, s{sT2} offen")
    a("S1_W:")
    for i in range(4):
        a(f"buffer_load_dwordx4 {vr(64+4*i,4)}, v48, {R('wmod')}, s{sT0} offen nt")
        if i < 3: a(f"s_add_u32 s{sT0}, s{sT0}, 6144")
    masks()
    a("v_mov_b32 v53, 1")
    stamp("s1iss")
    a("s_waitcnt vmcnt(5)")
    silu_onehot(36, 128, 96)
    a(f"s_cmp_lg_u32 s{sW}, 1\ns_waitcnt vmcnt(4)\ns_barrier")
    stamp("s1c")
    a(f"s_cbranch_scc1 S1_NA\ns_mov_b64 exec, 1")
    a(f"buffer_atomic_add v53, v62, {R('dbg')}, 0 offen sc0 sc1")
    exec_all()
    a("s_waitcnt vmcnt(1)\nS1_NA:")
    for k in range(NPS1): ckv_dma(k)
    a(f"s_cmp_lg_u32 s{sW}, 0\ns_cbranch_scc1 S1_NOLN")
    for i in range(8):
        a(f"v_lshlrev_b32 v{96+2*i}, 16, v{80+i}\nv_and_b32 v{97+2*i}, 0xffff0000, v{80+i}")
    a("v_pk_add_f32 v[112:113], v[96:97], v[98:99]")
    for i in range(2, 8): a(f"v_pk_add_f32 v[112:113], v[112:113], {vr(96+2*i,2)}")
    a("v_add_f32 v112, v112, v113")
    def red32(r, t):
        red_dpp("v_add_f32", [r], R16)
        a(f"v_mov_b32 v{t}, v{r}\nv_permlane16_swap_b32 v{r}, v{t}\nv_add_f32 v{r}, v{r}, v{t}")
    red32(112, 113)
    a(f"v_mul_f32 v112, {hex(f2u(1/512))}, v112")
    for i in range(16): a(f"v_sub_f32 v{96+i}, v{96+i}, v112")
    a("v_mul_f32 v114, v96, v96")
    for i in range(1, 16): a(f"v_fmac_f32 v114, v{96+i}, v{96+i}")
    red32(114, 113)
    a(f"v_mov_b32 v113, {hex(f2u(1e-5))}\nv_fmac_f32 v113, {hex(f2u(1/512))}, v114\nv_rsq_f32 v113, v113")
    a("v_lshlrev_b32 v116, 16, v88\nv_and_b32 v117, 0xffff0000, v88\nv_lshlrev_b32 v118, 16, v89\nv_and_b32 v119, 0xffff0000, v89")
    for i in range(4): a(f"v_sub_f32 v{116+i}, v{116+i}, v112\nv_mul_f32 v{116+i}, v{116+i}, v113")
    a(f"s_cmp_eq_u32 s{sP1}, 0\ns_cselect_b32 s{sT0}, 1.0, 0\nv_mov_b32 v120, s{sT0}")
    a("S1_NOLN:")
    a(f"s_cmp_eq_u32 s{sW}, 1\ns_cbranch_scc1 S1_W1\ns_waitcnt vmcnt({NPS1})\nS1_W1:")
    stamp("s1w")
    mod_reduce(64, 128)
    stamp("s1bar")
    a(f"s_cmp_lg_u32 s{sW}, 1\ns_cbranch_scc1 S1_NF\ns_waitcnt vmcnt({NPS1})\nv_readfirstlane_b32 s{sE0}, v53")
    a(f"s_cmp_lg_u32 s{sE0}, 31\ns_cbranch_scc1 S1_DONE\ns_mov_b64 exec, 1\nbuffer_store_dword v53, v62, {R('dbg')}, 0 offen offset:128 sc1")
    exec_all()
    a(f"S1_NF:\ns_cmp_lg_u32 s{sW}, 0\ns_cbranch_scc1 S1_DONE")
    sum8(44, RED, 1024, 64)
    for i in range(4): a(f"v_add_f32_dpp v{68+i}, v{64+i}, v120 row_ror:8 {FULL}")
    for i in range(4): a(f"v_fmac_f32 v{64+i}, v{68+i}, v{116+i}")
    a("v_cvt_pk_bf16_f32 v64, v64, v65\nv_cvt_pk_bf16_f32 v65, v66, v67")
    exec_set("0x00ff00ff", "0x00ff00ff")
    a(f"buffer_store_dwordx2 v[64:65], v50, {R('ws')}, s{sT3} offen sc1")
    exec_all()
    a("S1_DONE:")
    stamp("s1pub")
    a("s_barrier")
    for k in range(NPS1, NPRE): ckv_dma(k)
    a("s_branch A2")
    a("A_PLAIN:")
    a("s_waitcnt lgkmcnt(0)")
    for k in range(NPRE): ckv_dma(k)
    a("A2:")
    for k in range(NPRE, 16):
        if k < THR: a(f"s_waitcnt vmcnt({NPRE-1})")
        if EH3 and k == 12: cnt_load()
        ckv_dma(k)
    if not EH3: cnt_load()
    stamp("aiss")
    late_common()
    srd("w1", "w2", "b1", "b2", "x", "out")
    a("v_lshrrev_b32 v47, 2, v2\nv_and_b32 v48, 3, v2\nv_and_b32 v49, 1, v3")
    a("v_and_b32 v50, 2, v47\nv_add_u32 v50, v50, v47\nv_xor_b32 v50, v50, v48")
    a(f"s_and_b32 s{sT1}, s{sW}, 1\nv_xor_b32 v51, s{sT1}, v49\nv_lshl_or_b32 v50, v51, 3, v50\nv_lshlrev_b32 v50, 4, v50")
    a("v_and_b32 v51, 1, v48\nv_lshl_or_b32 v50, v51, 3, v50")
    a("v_lshl_or_b32 v51, v49, 3, v47\nv_lshl_or_b32 v50, v51, 8, v50\nv_lshrrev_b32 v51, 1, v3\nv_lshl_or_b32 v50, v51, 14, v50")
    a(f"s_lshr_b32 s{sT1}, s{sW}, 1\ns_lshl_b32 s{sT1}, s{sT1}, 12\ns_add_u32 s{sT1}, s{sT1}, {KV}\nv_add_u32 v16, s{sT1}, v50")
    for i in range(4):
        for hh in range(2):
            if i or hh: a(f"v_xor_b32 v{16+2*i+hh}, {(hh*(1024|32))|((i>>1)*64)|((i&1)*8)}, v16")
    for k in range(8): a(f"v_add_u32 v{24+k}, 0x10000, v{16+k}")
    a("v_lshrrev_b32 v46, 3, v1\nv_and_b32 v47, 2, v46\nv_and_b32 v54, 7, v1\nv_xor_b32 v54, v54, v47\nv_lshlrev_b32 v54, 4, v54\nv_lshl_or_b32 v54, v46, 10, v54\nv_xor_b32 v55, 64, v54")
    a("v_lshrrev_b32 v46, 2, v1\nv_and_b32 v47, 2, v3\nv_and_b32 v56, 3, v1\nv_xor_b32 v56, v56, v47\nv_lshlrev_b32 v56, 4, v56\nv_mul_u32_u24 v46, 3584, v46\nv_add_u32 v56, v56, v46")
    a(f"s_and_b32 s{sT1}, s{sW}, 1\ns_lshl_b32 s{sT1}, s{sT1}, 1\ns_and_b32 s{sT2}, s{sW}, 2\ns_lshl_b32 s{sT2}, s{sT2}, 2\ns_or_b32 s{sT1}, s{sT1}, s{sT2}")
    a(f"v_xor_b32 v45, s{sT1}, v2\nv_lshlrev_b32 v45, 4, v45\nv_lshl_or_b32 v45, v3, 12, v45")
    a(f"s_and_b32 s{sT1}, s{sW}, 3\ns_lshl_b32 s{sT1}, s{sT1}, 10\ns_and_b32 s{sT2}, s{sW}, 4\ns_lshl_b32 s{sT2}, s{sT2}, 12\ns_or_b32 s{sT1}, s{sT1}, s{sT2}\nv_or_b32 v45, s{sT1}, v45")
    a("v_xor_b32 v46, 0x110, v45\nv_xor_b32 v47, 0x240, v45\nv_xor_b32 v48, 0x350, v45\nv_lshlrev_b32 v44, 4, v1")
    a(f"s_lshr_b32 s{sT0}, s{sX}, 2\ns_lshl_b32 s{sT0}, s{sT0}, 3\ns_add_u32 s{sT0}, s{sT0}, s{sW}\ns_lshl_b32 s{sT0}, s{sT0}, 12\ns_add_u32 s{sT0}, s{sT0}, {H3}")
    a("s_waitcnt vmcnt(8)")
    def h3_loads(js=range(4)):
        for j in js: a(f"buffer_load_dwordx4 {vr(192+4*j,4)}, v44, {R('ws')}, s{sT0} offen offset:{j*1024} sc1")
    for t in range(8): a(f"ds_read_b128 {vr(64+4*t,4)}, v{8+(t&3)} offset:{(t>>2)*4096}")
    a(f"v_and_b32 v49, 1, v3\nv_lshlrev_b32 v49, 9, v49\nv_lshl_or_b32 v49, v2, 5, v49\ns_lshl_b32 s{sT2}, s{sW}, 2\nv_add_u32 v59, s{sT2}, v49")
    if FULLST: a("v_and_b32 v50, 7, v2\nv_lshlrev_b32 v50, 10, v50\nv_lshl_or_b32 v50, v3, 4, v50\nv_lshrrev_b32 v51, 3, v2\nv_lshl_or_b32 v50, v51, 6, v50\nv_lshlrev_b32 v51, 3, v2")
    else: a("v_lshlrev_b32 v50, 10, v2\nv_lshl_or_b32 v50, v3, 4, v50\nv_lshlrev_b32 v51, 3, v2")
    for i in range(4): a(f"v_mov_b32 v{248+i}, 0x3f803f80")
    a(f"s_and_b32 s{sT1}, s{sW}, 1\ns_lshl_b32 s{sT1}, s{sT1}, 7\ns_add_u32 s{sT2}, s{sT1}, s{sB}\ns_lshl_b32 s{sT3}, s{sT2}, 7\ns_add_u32 s{sT3}, s{sT3}, {ML}")
    a(f"s_lshl_b32 s{sT2}, s{sT2}, 14\ns_lshl_b32 s{sCQ}, s{sW}, 7\ns_add_u32 s{sT2}, s{sT2}, s{sCQ}\ns_xor_b32 s{sCQ}, s{sT2}, {128<<14}\ns_add_u32 s{sT2}, s{sT2}, {H4}\ns_add_u32 s{sCQ}, s{sCQ}, {H4}")
    a(f"s_lshl_b32 s{sH}, s{sX}, 3\ns_cmp_ge_u32 s{sP}, 8\ns_cselect_b32 s{sH}, s{sH}, 64\ns_and_b32 s{sP}, s{sP}, 7\ns_add_u32 s{sH}, s{sH}, s{sP}")
    a(f"s_lshl_b32 s{sKVW}, s{sW}, 12\ns_add_u32 s{sKVW}, s{sKVW}, {B2L}")
    for q in (2, 3):
        a(f"s_waitcnt vmcnt({4 if EH3 else 12-4*q})")
        for t in range(4 * q, 4 * q + 4): a(f"ds_read_b128 {vr(64+4*t,4)}, v{8+(t&3)} offset:{(t>>2)*4096}")
        if EH3 and q == 2:
            cnt_check("AC")
            a("s_barrier")
            h3_loads()
    stamp("kvok")
    if not EH3: cnt_check("AC")
    a("s_barrier")
    stamp("acnt")
    def h4_clear():
        for so in (sT2, sCQ):
            a(f"buffer_store_dwordx4 v[40:43], v50, {R('ws')}, s{so} offen sc1\ns_add_u32 s{sE0}, s{so}, 8192")
            a(f"buffer_store_dwordx4 v[40:43], v50, {R('ws')}, s{sE0} offen sc1")
    def h7_clear():
        a(f"s_lshl_b32 s{sE0}, s{sB}, 10\ns_add_u32 s{sE0}, s{sE0}, {H7}\ns_lshl_b32 s{sE1}, s{sW}, 7\ns_add_u32 s{sE0}, s{sE0}, s{sE1}\ns_mov_b64 exec, 0xff")
        a(f"buffer_store_dwordx4 v[40:43], v44, {R('ws')}, s{sE0} offen sc1")
        exec_all()
    if not HRD: h4_clear(); h7_clear()
    if not EH3: h3_loads()
    if HRD: h4_clear(); h7_clear()
    for u in range(4):
        for i in range(4):
            for hh in range(2):
                a(f"ds_read_b64_tr_b16 {vr(128+16*u+4*i+2*hh,2)}, v{16+8*(u>>1)+2*i+hh} offset:{(u&1)*32768}")
    a(f"s_lshl_b32 s{sT1}, s{sT1}, 5")
    for t in range(4): a(f"v_or_b32 v{8+t}, s{sT1}, v{4+t}\nv_xor_b32 v{12+t}, 0x1000, v{8+t}")
    a(f"s_waitcnt vmcnt({5 if HRD else 0})\ns_branch H3W\nH3L:")
    h3_loads()
    a("s_waitcnt vmcnt(0)\nH3W:")
    check([195 + 4 * i for i in range(4)], 52, "H3L", "H3OK", lambda j: h3_loads([j]), [[195 + 4 * i] for i in range(4)])
    a("H3OK:")
    stamp("h3ok")
    for j in range(4): a(f"ds_write_b128 v{45+j}, {vr(192+4*j,4)} offset:{QL}")
    a("s_waitcnt lgkmcnt(0)\ns_barrier")
    stamp("qlbar")
    NB = 12
    def qrd(k): a(f"ds_read_b128 {vr(192+4*(k%NB),4)}, v{4+((k>>1)&3)} offset:{QL+(k&1)*16384+(k>>3)*4096}")
    for k in range(NB): qrd(k)
    def w2_dma():
        a(f"s_lshl_b32 s{sT0}, s{sH}, 15\ns_lshl_b32 s{sT1}, s{sW}, 7\ns_add_u32 s{sT0}, s{sT0}, s{sT1}")
        for g in range(4):
            a(f"s_add_u32 m0, s{sKVW}, {32768+g*1024}")
            if g: a(f"s_add_u32 s{sT0}, s{sT0}, 8192")
            a(f"buffer_load_dwordx4 v{54+(g&1)}, {R('w2')}, s{sT0} offen nt lds")
    if W2E:
        a(f"s_cmp_ge_u32 s{sH}, 56\ns_cbranch_scc1 NOW2")
        w2_dma()
        a("NOW2:")
    for k in range(32):
        a(f"s_waitcnt lgkmcnt({min(NB-1 if k == 0 else NB-2, 31-k)})")
        mfma(240 + 4 * (k & 1), 64 + 4 * (k >> 1), 192 + 4 * (k % NB), "0" if k < 2 else None)
        if k >= 1 and k - 1 + NB < 32: qrd(k - 1 + NB)
    a("v_max3_f32 v52, v240, v241, v242\nv_max_f32 v52, v52, v243\nv_max3_f32 v53, v244, v245, v246\nv_max_f32 v53, v53, v247")
    a("v_permlane16_swap_b32 v52, v53\nv_max_f32 v52, v52, v53\nv_mov_b32 v53, v52\nv_permlane32_swap_b32 v52, v53\nv_max_f32 v52, v52, v53")
    a(f"s_mov_b32 exec_hi, 0\nds_write_b32 v59, v52 offset:{MXA}")
    exec_all()
    a("s_waitcnt lgkmcnt(0)\ns_barrier")
    stamp("mxbar")
    a(f"ds_read_b128 v[36:39], v49 offset:{MXA}\nds_read_b128 v[40:43], v49 offset:{MXA+16}")
    a(f"s_bitcmp1_b32 s{sW}, 0\ns_cselect_b64 vcc, -1, 0")
    a("s_waitcnt lgkmcnt(1)\nv_max3_f32 v52, v36, v37, v38\ns_waitcnt lgkmcnt(0)\nv_max3_f32 v53, v39, v40, v41\nv_max3_f32 v52, v52, v42, v43\nv_max_f32 v52, v52, v53")
    a("v_mov_b32 v53, v52\nv_permlane16_swap_b32 v52, v53")
    for i in range(8): a(f"v_sub_f32 v{240+i}, v{240+i}, v{52+(i>>2)}")
    for i in range(8): a(f"v_exp_f32 v{240+i}, v{240+i}")
    for ht in range(2):
        a(f"v_cvt_pk_bf16_f32 v{240+4*ht}, v{240+4*ht}, v{241+4*ht}\nv_cvt_pk_bf16_f32 v{241+4*ht}, v{242+4*ht}, v{243+4*ht}")
        a(f"ds_write_b64 v61, {vr(240+4*ht,2)} offset:{PA+ht*4096}")
    a("v_cndmask_b32 v52, v52, v53, vcc")
    a("s_waitcnt vmcnt(0) lgkmcnt(0)\ns_barrier")
    stamp("pbar")
    for k in range(8): a(f"ds_read_b128 {vr(192+4*k,4)}, v{8+k} offset:{PA}")
    a(f"s_cmp_ge_u32 s{sW}, 2\ns_cbranch_scc1 NOL")
    for u in range(4):
        a(f"s_waitcnt lgkmcnt({7-u})")
        mfma(96, 248, 192 + 4 * u, "0" if u == 0 else None)
    a("NOL:")
    def ostore(j):
        o, pk = 64 + 16 * j, 100 + 8 * j
        for i in range(4): a(f"v_cvt_pk_bf16_f32 v{pk+2*i}, v{o+4*i}, v{o+1+4*i}\nv_cvt_pk_bf16_f32 v{pk+1+2*i}, v{o+2+4*i}, v{o+3+4*i}")
        so = sCQ if j else sT2
        if FULLST:
            for r in range(4): a(f"v_mov_b32 v{116+r}, v{pk+r}")
            for r in range(4): a(f"v_mov_b32_dpp v{pk+r}, v{pk+4+r} row_ror:8 row_mask:0xf bank_mask:0xc")
            a(f"buffer_store_dwordx4 {vr(pk,4)}, v50, {R('ws')}, s{so} offen sc1")
            for r in range(4): a(f"v_mov_b32_dpp v{pk+4+r}, v{116+r} row_ror:8 row_mask:0xf bank_mask:0x3")
            a(f"s_add_u32 s{so}, s{so}, 8192")
            a(f"buffer_store_dwordx4 {vr(pk+4,4)}, v50, {R('ws')}, s{so} offen sc1")
        else:
            for k in range(2): a(f"buffer_store_dwordx4 {vr(pk+4*k,4)}, v50, {R('ws')}, s{so} offen offset:{k*64} sc1")
    for j in range(2):
        for u in range(4):
            a(f"s_waitcnt lgkmcnt({7-4*j-u})")
            for i in range(4): mfma(64 + 16 * j + 4 * i, 128 + 16 * u + 4 * i, 192 + 16 * j + 4 * u, "0" if u == 0 else None)
            if j == 0 and u == 0:
                a(f"v_mov_b32 v53, v96\ns_cmp_lt_u32 s{sW}, 2\ns_cselect_b64 exec, 0xffff, 0")
                a(f"buffer_store_dwordx2 v[52:53], v51, {R('ws')}, s{sT3} offen sc1")
                exec_all()
            if j == 1 and u == 0: ostore(0)
    ostore(1)
    stamp("h4st")
    a(f"s_cmp_ge_u32 s{sH}, 56\ns_cbranch_scc1 FIN")
    if MB == 2: a("s_waitcnt vmcnt(0)")
    if MB: a("s_barrier")
    w1_dma(0)
    if not W2E: w2_dma()
    w1_dma(1)
    stamp("w1iss")
    a("v_lshrrev_b32 v47, 2, v2\nv_and_b32 v48, 2, v47\nv_and_b32 v49, 1, v3\nv_lshl_or_b32 v48, v49, 2, v48\nv_bfe_u32 v49, v2, 1, 1\nv_or_b32 v48, v48, v49\nv_lshlrev_b32 v48, 4, v48")
    a(f"v_and_b32 v49, 1, v2\nv_lshl_or_b32 v48, v49, 3, v48\nv_lshl_add_u32 v50, v3, 3, v47\nv_lshl_or_b32 v44, v50, 7, v48\nv_add_u32 v44, s{sKVW}, v44")
    for i in range(1, 4): a(f"v_xor_b32 v{44+i}, {i<<5}, v44")
    a("v_and_b32 v49, 1, v3\nv_lshlrev_b32 v60, 4, v2\nv_lshl_or_b32 v60, v49, 3, v60\nv_lshrrev_b32 v49, 1, v3\nv_lshl_or_b32 v60, v49, 8, v60")
    a(f"v_and_b32 v49, 31, v1\nv_lshlrev_b32 v49, 1, v49\ns_lshl_b32 s{sT0}, s{sH}, 6\ns_and_b32 s{sB6}, s{sW}, 1\ns_lshl_b32 s{sT1}, s{sB6}, 10")
    a(f"s_bfe_u32 s{sCQ}, s{sH}, 0x10003\ns_lshl_b32 s{sT2}, s{sCQ}, 9")
    a(f"buffer_load_ushort v40, v49, {R('b1')}, s{sT0} offen")
    a(f"buffer_load_dwordx2 v[36:37], v60, {R('x')}, s{sT1} offen\nbuffer_load_dwordx2 v[38:39], v60, {R('x')}, s{sT1} offen offset:512")
    a(f"buffer_load_dwordx2 v[42:43], v60, {R('b2')}, s{sT2} offen")
    a("v_lshrrev_b32 v50, 2, v2\nv_lshl_add_u32 v50, v3, 3, v50\nv_and_b32 v48, 3, v2\nv_lshlrev_b32 v48, 3, v48\nv_and_b32 v49, 1, v3\nv_lshl_or_b32 v48, v49, 5, v48")
    a(f"v_lshl_or_b32 v48, v50, 6, v48\nv_add_u32 v48, s{sKVW}, v48\nv_xor_b32 v49, 32, v48")
    a(f"v_and_b32 v41, 1, v2\nv_lshlrev_b32 v50, 10, v41\nv_lshl_or_b32 v50, v3, 4, v50\ns_lshl_b32 s{sT0}, s{sW}, 7\nv_add_u32 v50, s{sT0}, v50")
    a(f"v_bfe_u32 v51, v2, 1, 1\nv_lshlrev_b32 v51, 6, v51\nv_lshl_or_b32 v51, v41, 7, v51\nv_lshl_or_b32 v51, v3, 4, v51\ns_lshl_b32 s{sT1}, s{sW}, 8\nv_add_u32 v51, s{sT1}, v51")
    a(f"v_lshlrev_b32 v52, 2, v1\nv_lshl_add_u32 v53, v1, 1, s{sT0}\nv_lshlrev_b32 v57, 6, v41\nv_lshl_or_b32 v57, v3, 4, v57\nv_add_u32 v57, s{sT0}, v57")
    a("v_mul_u32_u24 v58, 57344, v41\nv_lshrrev_b32 v41, 1, v2\nv_lshl_add_u32 v58, v41, 5, v58\nv_lshl_add_u32 v58, v3, 3, v58")
    a("v_lshlrev_b32 v59, 4, v2\nv_lshl_or_b32 v59, v3, 10, v59")
    for i in range(32): a(f"v_mov_b32 v{192+i}, 0")
    a("v_cmp_gt_u32 vcc, 8, v2")
    for r in range(4): a(f"v_and_b32 v{224+r}, 0x3f803f80, v{32+r}")
    for r in range(4): a(f"v_cndmask_b32 v{228+r}, 0, v{224+r}, vcc\nv_xor_b32 v{232+r}, v{228+r}, v{224+r}")
    a("s_waitcnt vmcnt(0)")
    for tau in range(2):
        for ft in range(2):
            for hh in range(2): a(f"ds_read_b64_tr_b16 {vr(64+8*tau+4*ft+2*hh,2)}, v{48+ft} offset:{tau*2048+hh*256}")
    for i in range(4):
        for hh in range(2): a(f"ds_read_b64_tr_b16 {vr(80+4*i+2*hh,2)}, v{44+i} offset:{32768+hh*512}")
    a(f"s_cmp_ge_u32 s{sW}, 2\ns_cbranch_scc1 MLP_Y")
    a(f"s_lshl_b32 s{sT1}, s{sW}, 12\ns_add_u32 s{sT1}, s{sT1}, {HM}")
    a("HML:")
    for k in range(4):
        a(f"s_add_u32 s{sT0}, s{sT1}, {k*8192}")
        for be in range(4): a(f"buffer_load_dwordx4 {vr(128+16*k+4*be,4)}, v59, {R('ws')}, s{sT0} offen offset:{be*256} sc1")
    a("s_waitcnt vmcnt(0)")
    check([129 + 2 * i for i in range(32)], 41, "HML", "HMOK")
    a("HMOK:")
    stamp("hmok")
    for k in range(4):
        for be in range(4): mfma(96 + 8 * k + 4 * (be >> 1), 228 + 4 * (be & 1), 128 + 16 * k + 4 * be, "0" if (be & 1) == 0 else None)
    a(f"s_lshl_b32 s{sT1}, s{sW}, 14\ns_add_u32 s{sT1}, s{sT1}, {H5}")
    for i in range(4): a(f"v_lshlrev_b32 v{240+2*i}, 16, v{36+i}\nv_and_b32 v{241+2*i}, 0xffff0000, v{36+i}")
    for i in range(8): a(f"v_add_f32 v{112+i}, 1.0, v{112+i}")
    a("H5L:")
    def h5_load(k):
        if k % 4 == 0 or k == 15: a(f"s_add_u32 s{sT0}, s{sT1}, {(k>>2)*4096}")
        a(f"buffer_load_dwordx4 {vr(128+4*k,4)}, v59, {R('ws')}, s{sT0} offen offset:{(k&3)*256} sc1")
    for k in range(16): h5_load(k)
    a("H5W:")
    for i in range(4):
        for be in range(4):
            k = 4 * i + be
            a(f"s_waitcnt vmcnt({15-k})")
            mfma(248 + 4 * (be >> 1), 228 + 4 * (be & 1), 128 + 4 * k, "0" if (i == 0 and (be & 1) == 0) else None)
            a(f"v_max3_u32 v41, v{41 if k else 129}, v{129+4*k}, v{131+4*k}")
    check([41], 41, "H5L", "H5OK", h5_load, [[129 + 4 * k, 131 + 4 * k] for k in range(16)])
    a("H5OK:")
    stamp("h5ok")
    for i in range(8): a(f"v_fmac_f32 v{240+i}, v{96+i}, v{248+i}")
    def ln(src, dst):
        a(f"v_pk_add_f32 v[36:37], {vr(src,2)}, {vr(src+2,2)}\nv_pk_mul_f32 v[38:39], {vr(src,2)}, {vr(src,2)}")
        for i in range(1, 4):
            if i > 1: a(f"v_pk_add_f32 v[36:37], v[36:37], {vr(src+2*i,2)}")
            a(f"v_pk_fma_f32 v[38:39], {vr(src+2*i,2)}, {vr(src+2*i,2)}, v[38:39]")
        a("v_add_f32 v36, v36, v37\nv_add_f32 v38, v38, v39")
        red_dpp("v_add_f32", [36, 38], R16)
        red_s("v_add_f32", [36, 38], [37, 39])
        a(f"v_mul_f32 v36, {hex(f2u(1/512))}, v36\nv_mov_b32 v37, {hex(f2u(1e-5))}\nv_fmac_f32 v37, {hex(f2u(1/512))}, v38")
        a("v_fma_f32 v37, -v36, v36, v37\nv_rsq_f32 v37, v37")
        for i in range(8): a(f"v_sub_f32 v{dst+i}, v{src+i}, v36")
        for i in range(8): a(f"v_mul_f32 v{dst+i}, v{dst+i}, v37")
    ln(240, 128)
    for i in range(8): a(f"v_fma_f32 v{128+i}, v{128+i}, v{112+i}, v{104+i}")
    ln(128, 128)
    for i in range(4): a(f"v_cvt_pk_bf16_f32 v{128+i}, v{128+2*i}, v{129+2*i}")
    a(f"s_lshl_b32 s{sT0}, s{sW}, 10\nv_add_u32 v41, s{sT0}, v60")
    a(f"ds_write_b64 v41, v[128:129] offset:{YL}\nds_write_b64 v41, v[130:131] offset:{YL+512}")
    a("MLP_Y:")
    a("s_waitcnt lgkmcnt(0)\ns_barrier")
    stamp("ybar")
    for ft in range(2):
        m = hex(0x00030003 << (2 * ft)); exec_set(m, m)
        for tau in range(2): a(f"ds_read_b128 {vr(192+8*tau+4*ft,4)}, v50 offset:{YL+tau*64}")
    exec_all()
    a(f"s_lshl_b32 s{sT0}, s{sH}, 10\ns_lshl_b32 s{sT1}, s{sW}, 7\ns_add_u32 s{sT0}, s{sT0}, s{sT1}\ns_add_u32 s{sT0}, s{sT0}, {H7}")
    a("v_lshlrev_b32 v40, 16, v40")
    k = 0
    for ft in range(2):
        for tau in range(2):
            a(f"s_waitcnt lgkmcnt({3-k})")
            mfma(136, 64 + 8 * tau + 4 * ft, 192 + 8 * tau + 4 * ft, "0" if k == 0 else None); k += 1
    exec_set("0x000f000f", "0x000f000f")
    a(f"ds_write_b128 v51, v[136:139] offset:{RED}")
    exec_all()
    a("s_waitcnt lgkmcnt(0)\ns_barrier")
    for k in range(4): a(f"ds_read2st64_b32 {vr(136+2*k,2)}, v52 offset0:{2*k} offset1:{2*k+1}")
    a("s_waitcnt lgkmcnt(2)\nv_pk_add_f32 v[136:137], v[136:137], v[138:139]\ns_waitcnt lgkmcnt(0)\nv_pk_add_f32 v[140:141], v[140:141], v[142:143]")
    a("v_add_f32 v136, v136, v40\nv_pk_add_f32 v[136:137], v[136:137], v[140:141]\nv_add_f32 v136, v136, v137")
    G0 = -2 * 0.7978845608028654 * LOG2E
    a(f"v_mul_f32 v137, v136, v136\nv_mov_b32 v138, {hex(f2u(G0))}\nv_fmac_f32 v138, {hex(f2u(G0*0.044715))}, v137\nv_mul_f32 v137, v136, v138")
    a("v_exp_f32 v137, v137\nv_add_f32 v137, 1.0, v137\nv_rcp_f32 v137, v137\nv_mul_f32 v136, v136, v137\nv_cvt_pk_bf16_f32 v136, v136, v136")
    a(f"ds_write_b16 v53, v136 offset:{HID}")
    for i in range(4):
        m = hex(0x00030003 << (2 * i)); exec_set(m, m)
        a(f"ds_read_b128 {vr(208+4*i,4)}, v57 offset:{HID}")
    exec_all()
    for i in range(4):
        a(f"s_waitcnt lgkmcnt({3-i})")
        mfma(136, 80 + 4 * i, 208 + 4 * i, "0" if i == 0 else None)
    a("v_cvt_pk_bf16_f32 v136, v136, v137\nv_cvt_pk_bf16_f32 v137, v138, v139")
    exec_set("0x00ff00ff", "0x00ff00ff")
    a(f"buffer_store_dwordx2 v[136:137], v58, {R('ws')}, s{sT0} offen sc1")
    exec_all()
    stamp("h7pub")
    a("v_lshrrev_b32 v48, 3, v1\nv_and_b32 v49, 7, v1\nv_lshlrev_b32 v49, 4, v49\nv_lshl_or_b32 v48, v48, 10, v49")
    a(f"s_cmp_ge_u32 s{sH}, 16\ns_cbranch_scc1 FIN\ns_and_b32 s{sT0}, s{sH}, 1\ns_cmp_lg_u32 s{sT0}, s{sW}\ns_cbranch_scc1 FIN")
    a(f"s_cmp_eq_u32 s{sCQ}, 0\ns_cbranch_scc1 F_D0")
    for i in range(4): a(f"v_mov_b32 v{240+i}, v{244+i}\nv_mov_b32 v{120+i}, v{124+i}")
    a("F_D0:")
    a("v_lshlrev_b32 v244, 16, v42\nv_and_b32 v245, 0xffff0000, v42\nv_lshlrev_b32 v246, 16, v43\nv_and_b32 v247, 0xffff0000, v43")
    for i in range(4): a(f"v_fmac_f32 v{240+i}, v{120+i}, v{244+i}")
    a(f"s_mul_i32 s{sT1}, s{sW}, 57344\ns_lshr_b32 s{sT0}, s{sH}, 1\ns_lshl_b32 s{sT2}, s{sT0}, 7\ns_add_u32 s{sT1}, s{sT1}, s{sT2}\ns_add_u32 s{sT1}, s{sT1}, {H7}")
    a(f"s_and_b32 s{sT2}, s{sT0}, 1\ns_lshl_b32 s{sT2}, s{sT2}, 3\ns_lshl_b32 s{sT2}, 0x00ff00ff, s{sT2}\ns_bitcmp1_b32 s{sT0}, 1\ns_cselect_b32 s{sE0}, 0, s{sT2}\ns_cselect_b32 s{sE0+1}, s{sT2}, 0")
    a(f"s_lshl_b32 s{sT2}, s{sW}, 10\ns_lshl_b32 s{sT3}, s{sCQ}, 9\ns_add_u32 s{sT2}, s{sT2}, s{sT3}")
    a("s_waitcnt vmcnt(0)")
    a("H7L:")
    def h7_load(i):
        a(f"s_add_u32 s{sT0}, s{sT1}, {i*8192}")
        a(f"buffer_load_dwordx4 {vr(128+4*i,4)}, v48, {R('ws')}, s{sT0} offen sc1")
    for i in range(7): h7_load(i)
    a("H7W:")
    for i in range(7):
        a(f"s_waitcnt vmcnt({6-i})")
        mfma(248, 224, 128 + 4 * i, "0" if i == 0 else None)
        a(f"v_max3_u32 v41, v{41 if i else 129}, v{129+4*i}, v{131+4*i}")
    check([41], 41, "H7L", "H7OK", h7_load, [[129 + 4 * k, 131 + 4 * k] for k in range(7)])
    a("H7OK:")
    stamp("h7ok")
    red_dpp("v_add_f32", [248, 249, 250, 251], ["row_ror:8"])
    for i in range(4): a(f"v_fmac_f32 v{240+i}, v{120+i}, v{248+i}")
    a("v_cvt_pk_bf16_f32 v240, v240, v241\nv_cvt_pk_bf16_f32 v241, v242, v243")
    a(f"s_mov_b64 exec, s[{sE0}:{sE0+1}]")
    a(f"buffer_store_dwordx2 v[240:241], v60, {R('out')}, s{sT2} offen")
    stamp("aend")
    a("s_branch FIN")
    a("BPATH:")
    a(f"s_lshl_b32 s{sH}, s{sX}, 2\ns_lshr_b32 s{sT0}, s{sP}, 2\ns_add_u32 s{sH}, s{sH}, s{sT0}\ns_and_b32 s{sCQ}, s{sP}, 3")
    a("v_lshlrev_b32 v44, 4, v2\nv_lshl_or_b32 v44, v3, 16, v44")
    a(f"s_lshl_b32 s{sT0}, s{sW}, 19\ns_lshl_b32 s{sT1}, s{sH}, 8\ns_add_u32 s{sT0}, s{sT0}, s{sT1}")
    a(f"s_lshl_b32 s{sT2}, s{sCQ}, 17\ns_and_b32 s{sT2}, s{sT2}, 0x40000\ns_add_u32 s{sT0}, s{sT0}, s{sT2}")
    a(f"s_lshl_b32 s{sT2}, s{sCQ}, 3\ns_add_u32 s{sT2}, s{sT2}, s{sW}\ns_lshl_b32 s{sT2}, s{sT2}, 17\ns_add_u32 s{sT1}, s{sT1}, s{sT2}")
    a("v_lshl_add_u32 v48, v3, 13, v36")
    for g in range(1, 4): a(f"v_xor_b32 v{48+g}, {((g&1)*32)|((g>>1)*128)|(g*32768)}, v48")
    srd("wq", "wuk")
    a("v_lshlrev_b32 v45, 4, v2\nv_lshl_or_b32 v45, v3, 14, v45")
    a(f"s_and_b32 s{sB}, s{sH}, 16\ns_add_u32 s{sB}, s{sB}, s{sW}\ns_lshl_b32 s{sB6}, s{sB}, 7\ns_and_b32 s{sT3}, s{sH}, 15\ns_add_u32 s{sB6}, s{sB6}, s{sT3}")
    a(f"s_lshl_b32 s{sCK}, s{sB6}, 3\ns_lshl_b32 s{sB6}, s{sB6}, 2\ns_add_u32 s{sB6}, s{sB6}, s{sCQ}\ns_lshl_b32 s{sB6}, s{sB6}, 8\ns_add_u32 s{sB6}, s{sB6}, {H4}\ns_add_u32 s{sCK}, s{sCK}, {ML}")
    a(f"s_bitcmp1_b32 s{sCQ}, 0")
    stamp("prol")
    a("s_waitcnt lgkmcnt(0)\ns_cbranch_scc1 BQ1")
    H4O = [0, 0x10000, 0x100000, 0x110000]
    def clr():
        for i in range(4):
            a(f"s_add_u32 s{sT3}, s{sB6}, {H4O[i]}")
            a(f"buffer_store_dwordx4 v[40:43], v45, {R('ws')}, s{sT3} offen sc1")
    def wq_issue(rot):
        def ld(g, r):
            r ^= rot
            a(f"s_xor_b32 s{sT3}, s{sT0}, {g*262144+r*8192}")
            a(f"buffer_load_dwordx4 {vr(64+32*g+4*r,4)}, v44, {R('wq')}, s{sT3} offen{nt('wq')}")
        for r in range(4): ld(0, r)
        for g in range(4):
            a(f"s_add_u32 m0, s{sKVW}, {g*1024}")
            a(f"buffer_load_dwordx4 v{48+g}, {R('wuk')}, s{sT1} offen nt lds")
        if CLRPOS == 0: clr()
        for r in range(4, 8): ld(0, r)
        cnt_load()
        for r in range(8): ld(1, r)
    wq_issue(0)
    a("s_branch BQ2\nBQ1:")
    wq_issue(4)
    a("BQ2:")
    NC = 4 if CLRPOS == 1 else 0
    if NC: clr()
    stamp("wqiss")
    a(f"s_and_b32 s{sSZW}, s{sW}, 1\ns_and_b32 s{sT0}, s{sW}, 2\ns_lshl_b32 s{sT0}, s{sT0}, 1\ns_or_b32 s{sSZW}, s{sSZW}, s{sT0}")
    a(f"s_and_b32 s{sT0}, s{sW}, 4\ns_lshr_b32 s{sT0}, s{sT0}, 1\ns_or_b32 s{sSZW}, s{sSZW}, s{sT0}")
    late_common()
    srd("wuv", "wo", "wmod", "c")
    a("v_and_b32 v46, 7, v2\nv_lshlrev_b32 v46, 10, v46\nv_lshl_or_b32 v46, v3, 4, v46")
    a(f"s_lshl_b32 s{sT2}, s{sW}, 7\ns_lshl_b32 s{sT3}, s{sCQ}, 5\ns_and_b32 s{sT3}, s{sT3}, 64\ns_or_b32 s{sT2}, s{sT2}, s{sT3}\ns_xor_b32 s{sT3}, s{sT2}, 64")
    a(f"v_and_b32 v47, 1, v3\nv_lshlrev_b32 v47, 3, v47\nv_or_b32 v52, s{sSZW}, v47\nv_xor_b32 v52, v52, v2\nv_or_b32 v47, s{sW}, v47")
    a("v_lshlrev_b32 v47, 8, v47\nv_lshl_or_b32 v47, v52, 4, v47")
    a("v_lshrrev_b32 v53, 3, v2\nv_lshlrev_b32 v53, 15, v53\nv_lshl_or_b32 v53, v3, 3, v53")
    a(f"v_lshrrev_b32 v252, 3, v2\nv_lshlrev_b32 v252, 8, v252\nv_lshl_or_b32 v252, v3, 3, v252\ns_lshl_b32 s100, s{sW}, 5\nv_add_u32 v252, s100, v252\nv_lshlrev_b32 v253, 4, v1")
    a("s_mov_b32 s100, 0x05040100\ns_mov_b32 s101, 0x07060302")
    def transpose(g):
        for j in range(8):
            for rho in range(4):
                a(f"v_perm_b32 v{128+32*g+4*j+rho}, v{64+32*g+4*(2*rho+1)+(j>>1)}, v{64+32*g+4*(2*rho)+(j>>1)}, s{100+(j&1)}")
    a(f"s_waitcnt vmcnt({8+NC})")
    stamp("wq0")
    cnt_check("BC")
    a("s_barrier")
    stamp("bcnt")
    def h1_loads(js=(0, 1)):
        for j in js: a(f"buffer_load_dwordx4 {vr(36+204*j,4)}, v46, {R('ws')}, s{sT3 if j else sT2} offen sc1")
    h1_loads()
    for t in range(4): a(f"ds_read_b128 {vr(192+4*t,4)}, v{8+t}")
    transpose(0)
    a(f"s_waitcnt vmcnt({2+NC})")
    stamp("wq")
    transpose(1)
    a("s_branch H1W\nH1L:")
    h1_loads()
    a("H1W:\ns_waitcnt vmcnt(0)")
    check([37, 39, 241, 243], 52, "H1L", "H1OK", lambda j: h1_loads([j]), [[37, 39], [241, 243]])
    a("H1OK:")
    stamp("h1ok")
    for g in range(2):
        for j in range(8): mfma(208 + 4 * j, 36 + 204 * g, 128 + 32 * g + 4 * j, "0" if g == 0 else None)
    a("s_waitcnt lgkmcnt(0)")
    stamp("qmf")
    for j in range(8):
        a(f"v_pk_add_f32 {vr(208+4*j,2)}, {vr(208+4*j,2)}, {vr(210+4*j,2)}")
    for j in range(8): a(f"v_add_f32 v{208+4*j}, v{208+4*j}, v{209+4*j}")
    for j in range(4): a(f"v_cvt_pk_bf16_f32 v{56+j}, v{208+8*j}, v{212+8*j}")
    a("s_mov_b32 exec_hi, 0")
    a(f"ds_write_b128 v47, v[56:59] offset:{PB}")
    exec_all()
    a("s_waitcnt lgkmcnt(0)\ns_barrier")
    stamp("qbar")
    for t in range(4): a(f"ds_read_b128 {vr(64+4*t,4)}, v{4+t} offset:{PB}")
    a(f"s_lshl_b32 s{sT0}, s{sH}, 10\ns_lshl_b32 s{sT1}, s{sCQ}, 8\ns_add_u32 s{sT0}, s{sT0}, s{sT1}\ns_lshl_b32 s{sT1}, s{sW}, 5\ns_add_u32 s{sT0}, s{sT0}, s{sT1}\ns_add_u32 s{sT0}, s{sT0}, {H3}")
    for t in range(4):
        a(f"s_waitcnt lgkmcnt({3-t})")
        mfma(208, 192 + 4 * t, 64 + 4 * t, "0" if t == 0 else None)
    red_dpp("v_add_f32", [208, 209, 210, 211], R8)
    for i in range(4): a(f"v_mul_f32 v{208+i}, {hex(f2u(128**-0.5*LOG2E))}, v{208+i}")
    a("v_cvt_pk_bf16_f32 v208, v208, v209\nv_cvt_pk_bf16_f32 v209, v210, v211")
    exec_set("0x01010101", "0x01010101")
    if FL3: pub_line(208, 15, "P3")
    else: a(f"buffer_store_dwordx2 v[208:209], v53, {R('ws')}, s{sT0} offen sc1")
    exec_all()
    stamp("h3pub")
    a("v_lshlrev_b32 v47, 4, v2\nv_lshl_or_b32 v48, v3, 13, v47")
    a(f"s_lshl_b32 s{sT1}, s{sCQ}, 3\ns_add_u32 s{sT1}, s{sT1}, s{sW}\ns_lshl_b32 s{sT1}, s{sT1}, 17\ns_lshl_b32 s{sT2}, s{sH}, 8\ns_add_u32 s{sT1}, s{sT1}, s{sT2}")
    for g in range(4):
        if g: a(f"s_add_u32 s{sT1}, s{sT1}, 32768")
        a(f"buffer_load_dwordx4 {vr(192+4*g,4)}, v48, {R('wuv')}, s{sT1} offen nt")
    a("v_lshrrev_b32 v46, 3, v1\nv_and_b32 v47, 2, v46\nv_and_b32 v54, 7, v1\nv_xor_b32 v54, v54, v47\nv_lshlrev_b32 v54, 4, v54\nv_lshl_or_b32 v54, v46, 10, v54\nv_xor_b32 v55, 64, v54")
    a("v_mul_u32_u24 v57, 24576, v3\nv_lshl_add_u32 v57, v2, 4, v57")
    c_addr(58)
    a(f"s_lshl_b32 s{sKVW}, s{sW}, 12\ns_add_u32 s{sKVW}, s{sKVW}, {B2L}")
    a(f"s_lshl_b32 s{sT0}, s{sX}, 1\ns_lshr_b32 s{sT1}, s{sP}, 3\ns_add_u32 s{sT0}, s{sT0}, s{sT1}\ns_lshl_b32 s{sT0}, s{sT0}, 3\ns_add_u32 s{sT0}, s{sT0}, s{sW}\ns_lshl_b32 s{sT0}, s{sT0}, 15")
    a(f"s_and_b32 s{sT1}, s{sP}, 7\ns_lshl_b32 s{sT1}, s{sT1}, 7\ns_add_u32 s{sT0}, s{sT0}, s{sT1}")
    for g in range(4):
        a(f"s_add_u32 m0, s{sKVW}, {g*1024}")
        if g: a(f"s_add_u32 s{sT0}, s{sT0}, 8192")
        a(f"buffer_load_dwordx4 v{54+(g&1)}, {R('wo')}, s{sT0} offen nt lds")
    a(f"v_lshlrev_b32 v44, 1, v3\nv_xor_b32 v44, v44, v2\nv_lshlrev_b32 v44, 4, v44\nv_lshl_or_b32 v44, v3, 8, v44")
    a(f"s_lshl_b32 s{sT0}, s{sW}, 12\ns_add_u32 s{sT0}, s{sT0}, {KV}\nv_add_u32 v60, s{sT0}, v44\nv_xor_b32 v59, {2048|128}, v60")
    a(f"s_cmp_lt_u32 s{sP}, 8\ns_cbranch_scc1 NOHM")
    a(f"s_and_b32 s{sT0}, s{sP}, 3\ns_lshl_b32 s{sT0}, s{sT0}, 3\ns_add_u32 s{sT0}, s{sT0}, s{sW}\ns_lshl_b32 s{sT1}, s{sT0}, 5\ns_mul_i32 s{sT0}, s{sT0}, {16*6144}")
    a(f"s_lshl_b32 s{sT2}, s{sX}, 1\ns_bfe_u32 s{sT3}, s{sP}, 0x10002\ns_add_u32 s{sT2}, s{sT2}, s{sT3}\ns_lshl_b32 s{sT2}, s{sT2}, 8\ns_add_u32 s{sT0}, s{sT0}, s{sT2}\ns_add_u32 s{sT0}, s{sT0}, 2048")
    a(f"buffer_load_dwordx2 v[112:113], v58, {R('c')}, s{sT1} offen")
    for i in range(4):
        a(f"buffer_load_dwordx4 {vr(96+4*i,4)}, v57, {R('wmod')}, s{sT0} offen nt")
        if i < 3: a(f"s_add_u32 s{sT0}, s{sT0}, 6144")
    a("s_waitcnt vmcnt(9)")
    for g in range(4): a(f"ds_write_b128 v{60-(g>>1)}, {vr(192+4*g,4)} offset:{(g&1)*1024}")
    a("s_waitcnt vmcnt(0)\nv_mov_b32 v59, v45")
    silu_onehot(112, 128, 64)
    a(f"s_lshl_b32 s{sT2}, s{sX}, 1\ns_bfe_u32 s{sT3}, s{sP}, 0x10002\ns_add_u32 s{sT2}, s{sT2}, s{sT3}")
    a(f"s_lshr_b32 s{sT3}, s{sT2}, 2\ns_lshl_b32 s{sT3}, s{sT3}, 13\ns_and_b32 s{sT2}, s{sT2}, 3\ns_lshl_b32 s{sT2}, s{sT2}, 8\ns_add_u32 s{sT3}, s{sT3}, s{sT2}")
    a(f"s_and_b32 s{sT2}, s{sP}, 3\ns_lshl_b32 s{sT2}, s{sT2}, 10\ns_add_u32 s{sT3}, s{sT3}, s{sT2}\ns_add_u32 s{sT3}, s{sT3}, {HM}")
    a("v_and_b32 v49, 1, v3\nv_lshlrev_b32 v50, 4, v2\nv_lshl_or_b32 v50, v49, 3, v50\nv_lshrrev_b32 v49, 1, v3\nv_lshl_or_b32 v50, v49, 12, v50")
    mod_reduce(96, 128)
    a(f"s_cmp_lg_u32 s{sW}, 0\ns_cbranch_scc1 HMDONE")
    sum8(44, RED, 1024, 64)
    a("v_cvt_pk_bf16_f32 v64, v64, v65\nv_cvt_pk_bf16_f32 v65, v66, v67")
    a(f"buffer_store_dwordx2 v[64:65], v50, {R('ws')}, s{sT3} offen sc1")
    a("HMDONE:\nv_mov_b32 v45, v59\ns_branch HM2\nNOHM:")
    a("s_waitcnt vmcnt(4)")
    for g in range(4): a(f"ds_write_b128 v{60-(g>>1)}, {vr(192+4*g,4)} offset:{(g&1)*1024}")
    a("s_waitcnt vmcnt(0) lgkmcnt(0)\ns_barrier\nHM2:")
    stamp("b2")
    a("v_lshrrev_b32 v47, 2, v2\nv_and_b32 v48, 1, v3\nv_lshl_or_b32 v48, v48, 2, v47\nv_lshlrev_b32 v48, 1, v48")
    a(f"v_bfe_u32 v49, v2, 1, 1\ns_lshl_b32 s{sT0}, s{sW}, 1\nv_or_b32 v49, s{sT0}, v49\nv_xor_b32 v48, v48, v49\nv_lshlrev_b32 v48, 4, v48")
    a(f"v_and_b32 v49, 1, v2\nv_lshl_or_b32 v48, v49, 3, v48\nv_lshl_add_u32 v49, v3, 3, v47\nv_lshl_or_b32 v46, v49, 8, v48\nv_add_u32 v46, {KV}, v46")
    for t in range(4):
        for hh in range(2): a(f"ds_read_b64_tr_b16 {vr(96+4*t+2*hh,2)}, v46 offset:{t*8192+hh*1024}")
    a("v_mov_b32 v58, v45")
    a("v_lshrrev_b32 v47, 2, v2\nv_and_b32 v48, 2, v47\nv_and_b32 v49, 1, v3\nv_lshl_or_b32 v48, v49, 2, v48\nv_bfe_u32 v49, v2, 1, 1\nv_or_b32 v48, v48, v49\nv_lshlrev_b32 v48, 4, v48")
    a(f"v_and_b32 v49, 1, v2\nv_lshl_or_b32 v48, v49, 3, v48\nv_lshl_add_u32 v50, v3, 3, v47\nv_lshl_or_b32 v44, v50, 7, v48\nv_add_u32 v44, s{sKVW}, v44")
    for i in range(1, 4): a(f"v_xor_b32 v{44+i}, {i<<5}, v44")
    for i in range(4):
        for hh in range(2): a(f"ds_read_b64_tr_b16 {vr(64+4*i+2*hh,2)}, v{44+i} offset:{hh*512}")
    a("v_lshrrev_b32 v48, 3, v2\nv_lshlrev_b32 v49, 13, v48\nv_lshl_or_b32 v49, v3, 7, v49\nv_lshlrev_b32 v60, 10, v48\nv_lshl_or_b32 v60, v3, 3, v60")
    a(f"v_lshrrev_b32 v48, 1, v3\nv_lshlrev_b32 v48, 3, v48\nv_or_b32 v51, s{sW}, v48\nv_xor_b32 v50, v48, v2\nv_xor_b32 v50, s{sSZW}, v50\nv_lshlrev_b32 v50, 4, v50\nv_lshl_or_b32 v50, v51, 8, v50")
    a(f"v_xor_b32 v51, v2, v3\nv_and_b32 v51, 1, v51\nv_lshl_or_b32 v50, v51, 3, v50\nv_lshlrev_b32 v59, 3, v2\ns_lshl_b32 s{sT3}, s{sW}, 3\nv_add_u32 v51, s{sT3}, v59")
    a("v_cmp_gt_u32 vcc, 8, v2")
    for r in range(4): a(f"v_cndmask_b32 v{224+r}, 0, v{32+r}, vcc\nv_xor_b32 v{228+r}, v{224+r}, v{32+r}")
    a(f"s_add_u32 s{sT1}, s{sB6}, {H4O[1]}\ns_add_u32 s{sT2}, s{sB6}, {H4O[2]}\ns_add_u32 s{sT3}, s{sB6}, {H4O[3]}")
    stamp("h4poll")
    a("MLL:")
    def ml_load(j): a(f"buffer_load_dwordx2 {vr(44+2*j,2)}, v49, {R('ws')}, s{sCK} offen offset:{512*j} sc1")
    ml_load(0); ml_load(1)
    a("MLW:\ns_waitcnt vmcnt(0)")
    check([45, 47], 82, "MLL", "MLOK", ml_load, [[45], [47]])
    a("MLOK:")
    stamp("mlok")
    def h4_loads(js=range(4)):
        for i in js: a(f"buffer_load_dwordx4 {vr(128+4*i,4)}, v58, {R('ws')}, s{(sB6, sT1, sT2, sT3)[i]} offen sc1")
    h4_loads()
    a("v_max_f32 v52, v44, v46")
    red_s("v_max_f32", [52], [53])
    a("v_sub_f32 v80, v44, v52\nv_sub_f32 v81, v46, v52\nv_exp_f32 v80, v80\nv_exp_f32 v81, v81")
    a("v_cvt_pk_bf16_f32 v80, v80, v80\nv_cvt_pk_bf16_f32 v81, v81, v81")
    for i in range(4):
        for r in range(4): a(f"v_and_b32 v{144+4*i+r}, v{80+(i&1)}, v{224+4*(i>>1)+r}")
    a("v_and_b32 v80, 0xffff0000, v80\nv_and_b32 v81, 0xffff0000, v81\nv_mul_f32 v53, v80, v45\nv_fmac_f32 v53, v81, v47")
    red_s("v_add_f32", [53], [82])
    a(f"s_mov_b64 exec, 0x0101\nds_write_b64 v51, v[52:53] offset:{MLW}")
    exec_all()
    a(f"s_lshl_b32 s{sT0}, s{sH}, 3\ns_add_u32 s{sT0}, s{sT0}, s{sCQ}\ns_lshl_b32 s{sT0}, s{sT0}, 3\ns_add_u32 s{sT0}, s{sT0}, s{sW}\ns_lshl_b32 s{sT0}, s{sT0}, 5\ns_add_u32 s{sT0}, s{sT0}, {H4B}")
    a("s_branch H4W\nH4L:")
    h4_loads()
    a("H4W:")
    for i in range(4):
        a(f"s_waitcnt vmcnt({3-i})")
        mfma(208, 144 + 4 * i, 128 + 4 * i, "0" if i == 0 else None)
    check([131, 135, 139, 143], 82, "H4L", "H4OK", lambda j: h4_loads([j]), [[131 + 4 * i] for i in range(4)])
    a("H4OK:")
    stamp("h4ok")
    a("v_cvt_pk_bf16_f32 v208, v208, v209\nv_cvt_pk_bf16_f32 v209, v210, v211")
    a(f"ds_write_b64 v50, v[208:209] offset:{PB}")
    a("s_waitcnt lgkmcnt(0)\ns_barrier")
    a(f"ds_read_b64 v[52:53], v59 offset:{MLW}")
    for t in range(4): a(f"ds_read_b128 {vr(80+4*t,4)}, v{4+t} offset:{PB}")
    a("s_waitcnt lgkmcnt(4)")
    a(f"v_max_f32_dpp v44, v52, v52 {R8[0]} {FULL}")
    for t in range(4):
        a(f"s_waitcnt lgkmcnt({3-t})")
        mfma(212, 96 + 4 * t, 80 + 4 * t, "0" if t == 0 else None)
        if t < 2: a(f"v_max_f32_dpp v44, v44, v44 {R8[t+1]} {FULL}")
        if t == 2: a("v_sub_f32 v44, v52, v44\nv_exp_f32 v44, v44")
    a("v_mul_f32 v53, v53, v44")
    red_dpp("v_add_f32", [53], R8)
    a("v_rcp_f32 v53, v53")
    for i in range(4): a(f"v_mul_f32 v{212+i}, v{212+i}, v44")
    red_dpp("v_add_f32", [212, 213, 214, 215], R8)
    for i in range(4): a(f"v_mul_f32 v{212+i}, v{212+i}, v53")
    a("v_cvt_pk_bf16_f32 v212, v212, v213\nv_cvt_pk_bf16_f32 v213, v214, v215")
    exec_set("0x01010101", "0x01010101")
    if FL4: pub_line(212, 10, "P4")
    else: a(f"buffer_store_dwordx2 v[212:213], v60, {R('ws')}, s{sT0} offen sc1")
    exec_all()
    stamp("h4bpub")
    a("v_and_b32 v48, 7, v2\nv_lshlrev_b32 v48, 8, v48\nv_lshl_or_b32 v48, v3, 4, v48")
    a(f"s_lshl_b32 s{sT1}, s{sX}, 1\ns_lshr_b32 s{sT0}, s{sP}, 3\ns_add_u32 s{sT1}, s{sT1}, s{sT0}")
    a(f"s_lshl_b32 s{sT0}, s{sT1}, 1\ns_lshr_b32 s{sT2}, s{sW}, 2\ns_add_u32 s{sT0}, s{sT0}, s{sT2}\ns_lshl_b32 s{sT0}, s{sT0}, 11\ns_and_b32 s{sT2}, s{sW}, 3\ns_lshl_b32 s{sT2}, s{sT2}, 6\ns_add_u32 s{sT0}, s{sT0}, s{sT2}\ns_add_u32 s{sT0}, s{sT0}, {H4B}")
    a(f"s_lshl_b32 s{sT1}, s{sT1}, 10\ns_and_b32 s{sT2}, s{sP}, 7\ns_lshl_b32 s{sT2}, s{sT2}, 7\ns_add_u32 s{sT1}, s{sT1}, s{sT2}\ns_add_u32 s{sT1}, s{sT1}, {H5}")
    a(f"s_lshl_b32 s{sT2}, s{sW}, 9\nv_lshlrev_b32 v49, 2, v2\nv_lshl_or_b32 v49, v3, 8, v49\nv_add_u32 v49, s{sT2}, v49")
    a("v_lshlrev_b32 v50, 4, v1\nv_lshlrev_b32 v51, 3, v2\nv_lshl_or_b32 v51, v3, 14, v51")
    a("s_waitcnt lgkmcnt(0)" if S8NW else "s_waitcnt vmcnt(0) lgkmcnt(0)")
    stamp("s8poll")
    a("S8L:")
    def s8_load(j): a(f"buffer_load_dwordx4 v[36:39], v48, {R('ws')}, s{sT0} offen sc1")
    s8_load(0)
    a("S8W:\ns_waitcnt vmcnt(0)")
    for i in range(4): mfma(208 + 4 * i, 36, 64 + 4 * i, "0")
    check([39], 52, "S8L", "S8OK", s8_load, [[39]])
    a("S8OK:")
    stamp("s8ok")
    for i in range(4): a(f"v_pk_add_f32 {vr(208+4*i,2)}, {vr(208+4*i,2)}, {vr(210+4*i,2)}")
    for i in range(4): a(f"v_add_f32 v{208+4*i}, v{208+4*i}, v{209+4*i}")
    a("s_mov_b32 exec_hi, 0")
    a(f"ds_write2_b32 v49, v208, v212 offset0:0 offset1:16\nds_write2_b32 v49, v216, v220 offset0:32 offset1:48")
    a("s_waitcnt lgkmcnt(0)\ns_barrier")
    a(f"s_cmp_lg_u32 s{sW}, 0\ns_cbranch_scc1 FIN")
    sum8(50, RED, 512, 64)
    a("v_cvt_pk_bf16_f32 v64, v64, v65\nv_cvt_pk_bf16_f32 v65, v66, v67")
    a(f"buffer_store_dwordx2 v[64:65], v51, {R('ws')}, s{sT1} offen sc1")
    stamp("bend")
    a("FIN:")
    if stamps:
        exec_all()
        a("s_waitcnt vmcnt(0)\ns_memrealtime s[100:101]\ns_waitcnt lgkmcnt(0)")
        for k in range(11): a(f"v_writelane_b32 v36, s{80+2*k}, {k}")
        a(f"v_writelane_b32 v36, s{sIT}, 11")
        a(f"s_lshl_b32 s{sT0}, s2, 3\ns_add_u32 s{sT0}, s{sT0}, s{sW}\ns_lshl_b32 s{sT0}, s{sT0}, 6\ns_add_u32 s{sT0}, s{sT0}, {STAMP}")
        a("v_lshlrev_b32 v37, 2, v1\ns_mov_b64 exec, 0xffff")
        a(f"buffer_store_dword v36, v37, {R('ws')}, s{sT0} offen")
    a("s_waitcnt vmcnt(0)")
    if PROBE:
        if PROBE == "end": a("s_memrealtime s[82:83]")
        if PWG is not None: a(f"s_cmp_lg_u32 s2, {PWG}\ns_cbranch_scc1 END")
        a("s_waitcnt lgkmcnt(0)\ns_add_u32 s82, s82, 3000\nPRB:\ns_sleep 2\ns_memrealtime s[84:85]\ns_waitcnt lgkmcnt(0)\ns_sub_u32 s86, s84, s82\ns_cmp_lt_i32 s86, 0\ns_cbranch_scc1 PRB")
    a("END:\ns_endpgm")
    if PAD:
        L = a.lines
        idx = {l.split(";M ")[1]: i for i, l in enumerate(L) if ";M " in l}
        ins = {}
        for t, (ent, b, e) in enumerate([("aiss", "kvok", "h4st"), ("w1iss", "hmok", "aend"), ("wqiss", "bcnt", "h3pub"), ("h4poll", "mlok", "bend")]):
            if str(t) not in PADR: continue
            pos, n, bad = [], PAD, False
            for i in range(idx[b], idx[e]):
                l = L[i].strip()
                if n >= PAD and not bad and ";M " not in l: pos.append(i); n = 0
                if "exec" in l and not l.startswith("s_cbranch"): bad = not ("exec, -1" in l and l.startswith("s_mov_b64"))
                n += 1
            for k, i in enumerate(pos):
                ins[i] = [f"WP{t}_{k}:", f"    s_cbranch_execz " + (f"WP{t}_{k+8}" if k + 8 < len(pos) else f"WR{t}")]
            lad = ["    s_mov_b64 exec, 0"]
            for w in range(min(8, len(pos))): lad += [f"    s_cmp_eq_u32 s{sW}, {w}", f"    s_cbranch_scc1 WP{t}_{w}"]
            ins[idx[ent]] = lad + [f"WR{t}:", "    s_mov_b64 exec, -1"]
        out = []
        for i, l in enumerate(L):
            out += ins.get(i, [])
            if ";M " not in l: out.append(l)
        a.lines = out
    lines, pads = hazard.fix(a.lines)
    return wrap("\n".join(lines) + "\n", 256, 512, 160 * 1024)

if __name__ == "__main__":
    import sys
    open(sys.argv[1] if len(sys.argv) > 1 else "k.s", "w").write(gen())
```
